```python
import torch

def _softmax(x, axis=-1):
    return torch.softmax(x, dim=axis)
def _gelu(x):
    return torch.nn.functional.gelu(x, approximate="tanh")
def _silu(x):
    return torch.nn.functional.silu(x)
def _sigmoid(x):
    return torch.sigmoid(x)
def _layernorm(x, axis=-1, eps=1e-5):
    m = x.mean(dim=axis, keepdim=True)
    v = x.var(dim=axis, keepdim=True, unbiased=False)
    return (x - m) / torch.sqrt(v + eps)
def _scatter_add(tgt, idx, src, axis=0):
    return tgt.clone().index_add_(axis, idx, src)
def _segment_sum(src, seg, n):
    out = torch.zeros((n,) + src.shape[1:], dtype=src.dtype)
    return out.index_add_(0, seg, src)
def _pad(x, pw):
    flat = tuple(v for pair in reversed(pw) for v in pair)
    return torch.nn.functional.pad(x, flat)

kernel_name = 'gated_mix__ssm_conv_s4__dense_activation_relu__prompt'

def setup_inputs():

    _w = (lambda a: (lambda t: t.to(torch.bfloat16) if t.is_floating_point() else t)(torch.as_tensor(a)))
    def _A_setup():
        B, L, D, N = 1, 2048, 640, 128
        A_re = -(lambda _x: torch.exp(torch.as_tensor(_x)))((lambda *s: torch.randn(*s, dtype=torch.bfloat16) * 3.2)(D, N))
        A_im = torch.pi * (lambda *s: torch.randn(*s, dtype=torch.bfloat16) * 0.2)(D, N)
        B_re = (lambda *s: torch.randn(*s, dtype=torch.bfloat16) * 0.4)(D, N)
        B_im = (lambda *s: torch.randn(*s, dtype=torch.bfloat16) * 0.4)(D, N)
        C_re = (lambda *s: torch.randn(*s, dtype=torch.bfloat16) * 0.4)(D, N)
        C_im = (lambda *s: torch.randn(*s, dtype=torch.bfloat16) * 0.4)(D, N)
        log_dt = (lambda *s: torch.randn(*s, dtype=torch.bfloat16) * 0.2)(D) * 0.5 - 4.0
        Dskip = (lambda *s: torch.randn(*s, dtype=torch.bfloat16) * 0.4)(D)
        return {
            "u": _w((lambda *s: torch.randn(*s, dtype=torch.bfloat16) * 0.05)(B, L, D)),
            "A_re": _w(A_re),
            "A_im": _w(A_im),
            "B_re": _w(B_re),
            "B_im": _w(B_im),
            "C_re": _w(C_re),
            "C_im": _w(C_im),
            "log_dt": _w(log_dt),
            "Dskip": _w(Dskip),
        }
    _A_in = _A_setup()

    def _B_setup():
        B, S, D, Dff = 1, 2048, 640, 1728
        return {
            "x": _w((lambda *s: torch.randn(*s, dtype=torch.bfloat16) * 0.05)(B, S, D)),
            "w1": _w((lambda *s: torch.randn(*s, dtype=torch.bfloat16) * 0.05)(D, Dff)),
            "w2": _w((lambda *s: torch.randn(*s, dtype=torch.bfloat16) * 0.05)(Dff, D)),
        }
    _B_in = _B_setup()

    return {
        "A_u": _A_in["u"],
        "A_A_re": _A_in["A_re"],
        "A_A_im": _A_in["A_im"],
        "A_B_re": _A_in["B_re"],
        "A_B_im": _A_in["B_im"],
        "A_C_re": _A_in["C_re"],
        "A_C_im": _A_in["C_im"],
        "A_log_dt": _A_in["log_dt"],
        "A_Dskip": _A_in["Dskip"],
        "B_x": _B_in["x"],
        "B_w1": _B_in["w1"],
        "B_w2": _B_in["w2"],
        "gate_w": _w((lambda *s: torch.randn(*s, dtype=torch.bfloat16) * 0.05)(640) * 16.0),
    }

def reference(A_u, A_A_re, A_A_im, A_B_re, A_B_im, A_C_re, A_C_im, A_log_dt, A_Dskip, B_x, B_w1, B_w2, gate_w):
    def _A_ref(u, A_re, A_im, B_re, B_im, C_re, C_im, log_dt, Dskip):
        Bsz, L, D = u.shape
        dt = torch.exp(log_dt)[:, None]
        A = A_re + 1j * A_im
        Bc = B_re + 1j * B_im
        Cc = C_re + 1j * C_im
        logdA = dt * A
        dB = dt * Bc
        l = (lambda x, dt: x.to(dt))(torch.arange(L), A_re.dtype)
        P = torch.exp(logdA[:, :, None] * l[None, None, :])
        K = torch.einsum("dn,dnl,dn->dl", Cc, P, dB).real
        L2 = 2 * L
        Kp = _pad(K, ((0, 0), (0, L)))
        up = (lambda x, *d: x.permute(*d))(u, 0, 2, 1)
        up = _pad(up, ((0, 0), (0, 0), (0, L)))
        Kf = (lambda x, axes=(-2,-1): torch.fft.rfft2(x.float(), dim=axes))(Kp[:, None, :], axes=(-2, -1))
        Uf = (lambda x, axes=(-2,-1): torch.fft.rfft2(x.float(), dim=axes))(up[:, :, None, :], axes=(-2, -1))
        Yf = Uf * Kf[None, :, :, :]
        y = (lambda x, s, axes=(-2,-1): torch.fft.irfft2(x, s=s, dim=axes).to(torch.bfloat16))(Yf, (1, L2), axes=(-2, -1))[:, :, 0, :L]
        y = (lambda x, *d: x.permute(*d))(y, 0, 2, 1) + u * Dskip[None, None, :]
        return y

    def _B_ref(x, w1, w2):
        h = torch.einsum("bsd,df->bsf", x, w1)
        zero = torch.zeros_like(h)
        h = torch.maximum(h, zero)
        return torch.einsum("bsf,fd->bsd", h, w2)

    x = A_u
    g = _sigmoid((x * gate_w).sum(-1, keepdims=True))
    a = _A_ref(x, A_A_re, A_A_im, A_B_re, A_B_im, A_C_re, A_C_im, A_log_dt, A_Dskip)
    b = _B_ref(x, B_w1, B_w2)
    return g * a + (1 - g) * b
```

```python
import re

REG_RE = re.compile(r"\b([vas])\[(\d+):(\d+)\]|\b([vas])(\d+)\b|\b(vcc|exec|m0)\b")
TRANS = ("v_exp_f32", "v_log_f32", "v_rcp_f32", "v_rsq_f32", "v_sqrt_f32", "v_sin_f32", "v_cos_f32")


def regs_of(op):
    out = set()
    for m in REG_RE.finditer(op):
        if m.group(1):
            for i in range(int(m.group(2)), int(m.group(3)) + 1):
                out.add(m.group(1) + str(i))
        elif m.group(4):
            out.add(m.group(4) + m.group(5))
        else:
            out.add(m.group(6))
    return out


def split_ops(rest):
    ops, depth, cur = [], 0, ""
    for ch in rest:
        if ch == "[":
            depth += 1
        elif ch == "]":
            depth -= 1
        if ch == "," and depth == 0:
            ops.append(cur.strip())
            cur = ""
        else:
            cur += ch
    if cur.strip():
        ops.append(cur.strip())
    return ops


class Ins:
    __slots__ = ("text", "mn", "defs", "uses", "kind", "srcc", "srcab", "states", "sdata")

    def __init__(self, text):
        self.text = text
        t = text.split(";")[0].strip()
        self.defs, self.uses, self.srcc, self.srcab, self.sdata = set(), set(), set(), set(), set()
        self.states = 1
        if not t or t.endswith(":") or t.startswith("."):
            self.mn, self.kind, self.states = "", "label" if t.endswith(":") else "none", 0
            return
        parts = t.split(None, 1)
        mn = self.mn = parts[0]
        rest = parts[1] if len(parts) > 1 else ""
        rest_nomod = re.sub(r"\b(op_sel|op_sel_hi|neg_lo|neg_hi|quad_perm):\[[^\]]*\]", "", rest)
        ops = split_ops(rest_nomod)
        R = [regs_of(o) for o in ops]
        allr = set().union(*R) if R else set()
        if mn.startswith("v_mfma"):
            self.kind = "mfma"
            self.defs = R[0]
            self.srcab = R[1] | R[2]
            self.srcc = R[3]
            self.uses = self.srcab | self.srcc
        elif mn.startswith("v_"):
            self.kind = "trans" if mn.replace("_e32", "").replace("_e64", "") in TRANS else "valu"
            self.defs = set(R[0])
            self.uses = set().union(*R[1:]) if len(R) > 1 else set()
            if "_co_" in mn:
                self.defs |= R[1]
            if mn.startswith(("v_fmac", "v_dot2c", "v_writelane", "v_permlane")):
                self.uses |= R[0]
            if mn.startswith("v_permlane"):
                self.defs |= R[1]
        elif mn.startswith("ds_"):
            self.kind = "ds"
            if mn.startswith(("ds_read", "ds_bpermute", "ds_permute", "ds_swizzle")):
                self.defs = R[0]
                self.uses = set().union(*R[1:])
            else:
                self.uses = allr
        elif mn.startswith(("buffer_", "global_")):
            self.kind = "vmem"
            if "_load" in mn and not re.search(r"\blds\b", rest):
                self.defs = R[0]
                self.uses = set().union(*R[1:])
            else:
                self.uses = set(allr)
                if re.search(r"\blds\b", rest):
                    self.uses.add("m0")
                    self.kind = "dma"
                if "_store" in mn and ("x4" in mn or "x3" in mn):
                    self.sdata = R[0] if mn.startswith("buffer_") else R[1]
        elif mn.startswith("s_"):
            self.kind = "salu"
            if mn == "s_nop":
                self.states = int(rest.strip(), 0) + 1
            elif mn.startswith(("s_cmp", "s_cbranch", "s_branch", "s_waitcnt", "s_barrier", "s_endpgm", "s_sleep",
                                "s_setprio", "s_bitcmp")):
                self.uses = allr
            else:
                self.defs = set(R[0]) if R else set()
                self.uses = set().union(*R[1:]) if len(R) > 1 else set()
                if "saveexec" in mn:
                    self.defs.add("exec")
        else:
            raise ValueError("unknown instruction: " + text)


def is_valu(i):
    return i.kind in ("valu", "trans")


def need_states(p, c):
    n = 0
    vec = lambda s: {r for r in s if r[0] in "va" and r != "vcc"}
    sca = lambda s: {r for r in s if r[0] == "s" or r == "vcc"}
    if is_valu(p):
        pv, ps = vec(p.defs), sca(p.defs)
        if c.kind == "mfma" and pv & c.uses:
            n = max(n, 2)
        if p.kind == "trans" and c.kind == "valu" and pv & c.uses:
            n = max(n, 1)
        if p.kind == "trans" and c.kind in ("ds", "vmem", "dma") and pv & c.uses:
            n = max(n, 1)
        if ps:
            if c.kind in ("vmem", "dma") and ps & c.uses:
                n = max(n, 5)
            if is_valu(c) and ps & c.uses:
                n = max(n, 4 if c.mn.startswith(("v_readlane", "v_writelane")) else 2)
            if c.kind == "salu" and ps & c.uses:
                n = max(n, 1)
        if c.mn.startswith(("v_readfirstlane", "v_readlane")) and pv & c.uses:
            n = max(n, 1)
        if is_valu(c) and ("dpp" in c.text or "row_" in c.text or "quad_perm" in c.text or c.mn.startswith("v_permlane")) and pv & c.uses:
            n = max(n, 2)
    if p.kind == "mfma":
        assert "16x16x32" in p.mn
        if c.kind == "mfma":
            if p.defs & c.srcab:
                n = max(n, 8)
            if p.defs & c.srcc and p.defs != c.srcc:
                n = max(n, 6)
            if p.defs & c.defs and not (p.defs & c.srcc):
                n = max(n, 8)
        elif p.defs & (c.uses | c.defs):
            n = max(n, 8)
        if p.srcc & c.defs and c.kind != "mfma":
            n = max(n, 3)
    if p.kind == "salu" and "m0" in p.defs and c.kind == "dma":
        n = max(n, 1)
    if p.sdata and p.sdata & c.defs:
        n = max(n, 2)
    return n


def insert_nops(lines):
    out = []
    nins = 0
    for ln in lines:
        c = Ins(ln)
        if c.kind not in ("label", "none"):
            dist, need = 0, 0
            for p in reversed(out):
                if dist >= 8:
                    break
                if p.kind in ("label", "none"):
                    continue
                k = need_states(p, c) - dist
                need = max(need, k)
                dist += p.states
            if need > 0:
                out.append(Ins(f"s_nop {need - 1}"))
                nins += 1
        out.append(c)
    return [i.text for i in out], nins


class Em:
    def __init__(self):
        self.L = []
        self.vm = 0
        self.vm_done = 0
        self.lg = 0
        self.lg_done = 0
        self.smem = False
        self.bg = []
        self.nlab = 0

    def __call__(self, s):
        mn = s.split(None, 1)[0] if s.strip() else ""
        assert not mn.startswith(("buffer_", "global_", "ds_", "s_load", "s_memtime", "s_memrealtime")), s
        self.L.append(s)

    def raw(self, s):
        self.L.append(s)

    def v(self, s):
        self.L.append(s)
        self.vm += 1
        return self.vm - 1

    def d(self, s):
        self.L.append(s)
        self.lg += 1
        return self.lg - 1

    def s(self, s):
        self.L.append(s)
        self.smem = True

    def wv(self, t=None):
        if t is None:
            t = self.vm - 1
        if t < self.vm_done:
            return
        n = min(63, self.vm - 1 - t)
        self.L.append(f"s_waitcnt vmcnt({n})")
        self.vm_done = max(self.vm_done, self.vm - n)

    def wl(self, t=None):
        if t is None:
            t = self.lg - 1
        if self.smem:
            self.L.append("s_waitcnt lgkmcnt(0)")
            self.smem = False
            self.lg_done = self.lg
            return
        if t < self.lg_done:
            return
        n = min(15, self.lg - 1 - t)
        self.L.append(f"s_waitcnt lgkmcnt({n})")
        self.lg_done = max(self.lg_done, self.lg - n)

    def state(self):
        return (self.vm, self.vm_done, self.lg, self.lg_done, self.smem)

    def restore(self, st):
        self.vm, self.vm_done, self.lg, self.lg_done, self.smem = st

    def join(self):
        self.vm += 1000
        self.vm_done = 0
        self.lg += 1000
        self.lg_done = 0
        self.smem = True
        return self.vm - 1

    def label(self, base="L"):
        self.nlab += 1
        return f"{base}_{self.nlab}"

    def tick(self, n=1):
        for _ in range(n):
            if self.bg:
                self.bg.pop(0)()

    def flush_bg(self):
        while self.bg:
            self.bg.pop(0)()


def V(b, n=1):
    return f"v{b}" if n == 1 else f"v[{b}:{b + n - 1}]"


def A(b, n=1):
    return f"a{b}" if n == 1 else f"a[{b}:{b + n - 1}]"


def S(b, n=1):
    return f"s{b}" if n == 1 else f"s[{b}:{b + n - 1}]"
```

```python
import sys
from asmlib import *

KN = "gated_mix__ssm_conv_s4__dense_activation_relu__prompt_kernel"
OPT = dict(stamp=0, rot=1, hflag_at=60, spin=20000, stop=99)
for a in sys.argv[2:]:
    k, v = a.split("=")
    OPT[k] = int(v)

WS_FP0 = 0x1000
WS_FH = 0x8000
WS_FY = 0x20000
WS_G = 0x30000
WS_UT = 0x100000
WS_YT = 0x400000
WS_W2F = 0x700000
WS_HF = 0xA00000
WS_END = 0x10C0000
WS_STAMP = 0x2000000
WS_SIZE = 0x2100000 if OPT["stamp"] else WS_END

sW, sXCD, sSLOT, sXR, sXC, sRB, sCB, sTB, sDB, sST = 3, 4, 5, 6, 7, 8, 9, 10, 11, 12
pU, pARE, pAIM, pBRE, pBIM, pCRE, pCIM, pLDT, pDSK, pW1, pW2, pGW, pOUT, pDBG, pWS = 16, 18, 20, 22, 24, 26, 28, 30, 32, 36, 38, 40, 42, 44, 46
rX, rW, rWS, rOUT, rST, sTAG = 48, 52, 56, 60, 64, 68
sXB, sWB, sLB = 70, 71, 72
sT = [73, 74, 75, 76, 77, 78, 79]
sCH, sLDT, sDSK, sW2B, sHB, sSPIN, sSSM, sC1, sC2, sYOK = 80, 81, 82, 84, 85, 86, 87, 90, 91, 92

vLANE, vI, vG, vSTAMP, vL16, vTMP, vTM2 = 1, 2, 3, 4, 5, 6, 7
vDX, vDW = 8, 10
vXA, vTA = 12, 16
vBAND = 24
RING = 32768
L_SSM = 98304
SSM_SZ = 12288
K_E, K_O, K_S2A, K_S2B, K_S3 = 8704, 8704 + 1216, 8704 + 2432, 8704 + 2432 + 256, 8704 + 2432 + 512
L_PART, L_AT, L_OS = 0, 61440, 74240

e = Em()
MF = "v_mfma_f32_16x16x32_bf16"
SC = "sc0 sc1"


def setexec(mask):
    if mask == -1:
        e("s_mov_b64 exec, -1")
    else:
        e(f"s_mov_b32 exec_lo, {mask & 0xffffffff:#x}")
        e(f"s_mov_b32 exec_hi, {mask >> 32:#x}")


def stamp(k, rt=False):
    if not OPT["stamp"]:
        return
    e.s(f"s_mem{'real' if rt else ''}time s[98:99]")
    e.wl()
    e(f"v_writelane_b32 v{vSTAMP}, s98, {k}")


def spin_check(load, regs, tk):
    lp, dn = e.label("Lsp"), e.label("Lsd")
    e.wv(tk)
    e(f"s_mov_b32 s{sSPIN}, 0")
    e(f"{lp}:")
    e(f"v_cmp_ne_u64 vcc, {S(sTAG, 2)}, {V(regs, 2)}")
    e(f"s_cbranch_vccz {dn}")
    e(f"s_add_u32 s{sSPIN}, s{sSPIN}, 1")
    e(f"s_cmp_gt_u32 s{sSPIN}, {OPT['spin']}")
    e(f"s_cbranch_scc1 {dn}")
    e("s_sleep 2")
    e.raw(load)
    e.raw("s_waitcnt vmcnt(0)")
    e(f"s_branch {lp}")
    e(f"{dn}:")


def get_tag(regs, tk, load):
    lp, dn = e.label("Ltg"), e.label("Ltd")
    e.wv(tk)
    e(f"s_mov_b32 s{sSPIN}, 0")
    e(f"{lp}:")
    e(f"v_readfirstlane_b32 s{sTAG}, v{regs}")
    e(f"v_readfirstlane_b32 s{sTAG + 1}, v{regs + 1}")
    e(f"s_cmp_lg_u32 s{sTAG + 1}, 0")
    e(f"s_cbranch_scc1 {dn}")
    e(f"s_add_u32 s{sSPIN}, s{sSPIN}, 1")
    e(f"s_cmp_gt_u32 s{sSPIN}, {OPT['spin']}")
    e(f"s_cbranch_scc1 {dn}")
    e("s_sleep 2")
    e.raw(load)
    e.raw("s_waitcnt vmcnt(0)")
    e(f"s_branch {lp}")
    e(f"{dn}:")
    e("s_nop 1")


def store_flag(srd, soff, tmp):
    e(f"v_mov_b32 v{tmp}, s{sTAG}")
    e(f"v_mov_b32 v{tmp + 1}, s{sTAG + 1}")
    e("s_mov_b64 exec, 1")
    e.v(f"buffer_store_dwordx2 {V(tmp, 2)}, off, {S(srd, 4)}, s{soff} {SC}")
    e("s_mov_b64 exec, -1")


def tr_addr(dst, ft_sgpr_or_none, ft_imm):
    e(f"v_lshrrev_b32 v{vTMP}, 2, v{vI}")
    e(f"v_and_b32 v{vTM2}, 1, v{vG}")
    e(f"v_lshl_or_b32 v{vTM2}, v{vTM2}, 2, v{vTMP}")
    e(f"s_add_u32 s{sT[6]}, s{ft_sgpr_or_none}, {ft_imm}")
    e(f"v_xor_b32 v{vTM2}, s{sT[6]}, v{vTM2}")
    e(f"v_lshl_add_u32 v{vTMP}, v{vG}, 3, v{vTMP}")
    e(f"v_lshlrev_b32 v{vTMP}, 8, v{vTMP}")
    e(f"v_lshl_add_u32 v{vTMP}, v{vTM2}, 5, v{vTMP}")
    e(f"v_and_b32 v{vTM2}, 3, v{vI}")
    e(f"v_lshl_add_u32 v{dst}, v{vTM2}, 3, v{vTMP}")


def wide_dma_addr(dst, pitch):
    e(f"v_lshlrev_b32 v{vTMP}, 1, v{vG}")
    e(f"v_xor_b32 v{vTMP}, v{vTMP}, v{vI}")
    e(f"v_mul_u32_u24 v{vTM2}, {pitch}, v{vG}")
    e(f"v_lshl_add_u32 v{dst}, v{vTMP}, 4, v{vTM2}")
    e(f"v_xor_b32 v{vTMP}, 8, v{vTMP}")
    e(f"v_lshl_add_u32 v{dst + 1}, v{vTMP}, 4, v{vTM2}")


def dma(basesg, imm_src, lds_sg, imm_lds, vaddr, srd):
    if lds_sg is None:
        e(f"s_mov_b32 m0, {imm_lds}")
    else:
        e(f"s_add_u32 m0, s{lds_sg}, {imm_lds}")
    e(f"s_add_u32 s{sT[5]}, s{basesg}, {imm_src}")
    return e.v(f"buffer_load_dwordx4 v{vaddr}, {S(srd, 4)}, s{sT[5]} offen lds")


def w2_reg(n):
    return A(4 * n, 4) if n < 64 else V(252 - 4 * (n - 64), 4)


def w2_load(n):
    ksl, dtl = divmod(n, 5)
    e(f"s_add_u32 s{sT[4]}, s{sW2B}, {dtl * 55296 + ksl * 1024}")
    return e.v(f"buffer_load_dwordx4 {w2_reg(n)}, v{vL16}, {S(rWS, 4)}, s{sT[4]} offen sc1")


e(f"{KN}:")
e("s_cmp_ge_u32 s2, 256")
e("s_cbranch_scc1 Lend")
e.s("s_load_dwordx16 s[16:31], s[0:1], 0")
e.s("s_load_dwordx16 s[32:47], s[0:1], 64")
if OPT["stamp"]:
    e.raw("s_memtime s[96:97]")
    e.raw("s_memrealtime s[94:95]")
e("s_getpc_b64 s[88:89]")
e("Lpc:")
e(f"v_and_b32 v{vLANE}, 63, v0")
e(f"v_lshrrev_b32 v{vTMP}, 6, v0")
e(f"v_and_b32 v{vI}, 15, v0")
e(f"v_readfirstlane_b32 s{sW}, v{vTMP}")
e(f"v_bfe_u32 v{vG}, v0, 4, 2")
e(f"v_lshlrev_b32 v{vL16}, 4, v{vLANE}")
e(f"s_and_b32 s{sXCD}, s2, 7")
e(f"s_lshr_b32 s{sSLOT}, s2, 3")
e(f"s_lshl_b32 s{sT[0]}, s{sSLOT}, 2")
e(f"s_add_u32 s{sT[0]}, s{sT[0]}, s{sW}")
e(f"s_mul_i32 s{sT[0]}, s{sT[0]}, 512")
e(f"v_and_b32 v{vTMP}, 3, v0")
e(f"v_lshlrev_b32 v{vTMP}, 7, v{vTMP}")
e(f"v_add_u32 v{vTMP}, s{sT[0]}, v{vTMP}")
e(f"v_min_u32 v{vTMP}, Lend-Lpc, v{vTMP}")
e.v(f"global_load_dword v55, v{vTMP}, s[88:89]")
e(f"s_lshr_b32 s{sXR}, s{sXCD}, 1")
e(f"s_and_b32 s{sXC}, s{sXCD}, 1")
e(f"s_and_b32 s{sT[0]}, s{sSLOT}, 7")
e(f"s_lshl3_add_u32 s{sTB}, s{sXR}, s{sT[0]}")
e(f"s_lshr_b32 s{sT[0]}, s{sSLOT}, 3")
e(f"s_lshl2_add_u32 s{sDB}, s{sXC}, s{sT[0]}")
e(f"s_lshl_b32 s{sLB}, s{sW}, 12")
e(f"s_mul_i32 s{sW2B}, s{sDB}, {5 * 55296}")
e(f"s_mul_i32 s{sT[0]}, s{sW}, {13 * 1024}")
e(f"s_add_u32 s{sW2B}, s{sW2B}, s{sT[0]}")
e(f"s_add_u32 s{sW2B}, s{sW2B}, {WS_W2F}")
for r, sz in ((rX, 2621440), (rW, 2211840), (rWS, WS_SIZE), (rOUT, 2621440), (rST, WS_SIZE)):
    e(f"s_mov_b32 s{r + 2}, {sz}")
    e(f"s_mov_b32 s{r + 3}, 0x20000")
e(f"s_cmp_ge_u32 s{sSLOT}, 28")
e("s_cbranch_scc1 Lfree")
st_entry = e.state()

e(f"s_and_b32 s{sT[0]}, s{sSLOT}, 3")
e(f"s_lshl2_add_u32 s{sRB}, s{sXR}, s{sT[0]}")
e(f"s_lshr_b32 s{sT[1]}, s{sSLOT}, 2")
e(f"s_mul_i32 s{sCB}, s{sXC}, 7")
e(f"s_add_u32 s{sCB}, s{sCB}, s{sT[1]}")
if OPT["rot"]:
    e(f"s_mul_i32 s{sT[0]}, s{sT[0]}, 5")
    e(f"s_lshr_b32 s{sT[0]}, s{sT[0]}, 1")
    e(f"s_mul_i32 s{sT[1]}, s{sT[1]}, 3")
    e(f"s_add_u32 s{sST}, s{sT[0]}, s{sT[1]}")
    e(f"s_mul_i32 s{sT[0]}, s{sST}, 6554")
    e(f"s_lshr_b32 s{sT[0]}, s{sT[0]}, 16")
    e(f"s_mul_i32 s{sT[0]}, s{sT[0]}, 10")
    e(f"s_sub_u32 s{sST}, s{sST}, s{sT[0]}")
else:
    e(f"s_mov_b32 s{sST}, 0")
e(f"s_mul_i32 s{sCH}, s{sXCD}, 28")
e(f"s_add_u32 s{sCH}, s{sCH}, s{sSLOT}")
e(f"s_mul_i32 s{sCH}, s{sCH}, 3")
e(f"s_add_u32 s{sCH}, s{sCH}, s{sW}")
e(f"s_cmp_lt_u32 s{sCH}, 640")
e(f"s_cselect_b32 s{sYOK}, {WS_SIZE}, 0")
e(f"s_min_u32 s{sCH}, s{sCH}, 639")
e(f"s_mul_i32 s{sSSM}, s{sW}, {SSM_SZ}")
e(f"s_add_u32 s{sSSM}, s{sSSM}, {L_SSM}")
e(f"v_lshrrev_b32 v{vTMP}, 3, v{vLANE}")
e(f"v_mul_u32_u24 v{vTM2}, 1280, v{vTMP}")
e(f"v_and_b32 v{vTMP}, 7, v{vLANE}")
e(f"v_xor_b32 v{vTMP}, v{vTMP}, v{vG}")
e(f"v_lshl_add_u32 v{vDX}, v{vTMP}, 4, v{vTM2}")
e(f"v_xor_b32 v{vDX + 1}, 64, v{vDX}")
wide_dma_addr(vDW, 3456)
e(f"s_lshr_b32 s{sT[0]}, s{sW}, 1")
e(f"s_lshl1_add_u32 s{sT[0]}, s{sCB}, s{sT[0]}")
e(f"s_cmp_lt_u32 s{sT[0]}, 27")
e(f"s_cselect_b32 s{rST + 2}, {WS_SIZE}, 0")
e(f"s_lshl_b32 s{sT[0]}, s{sCH}, 8")
e(f"v_lshl_add_u32 v56, v{vLANE}, 2, s{sT[0]}")


def stage_bases(with_wave):
    e(f"s_mul_i32 s{sXB}, s{sRB}, {128 * 1280}")
    e(f"s_lshl_b32 s{sT[0]}, s{sST}, 7")
    e(f"s_add_u32 s{sXB}, s{sXB}, s{sT[0]}")
    e(f"s_mul_i32 s{sWB}, s{sST}, {64 * 3456}")
    e(f"s_lshl_b32 s{sT[0]}, s{sCB}, 8")
    e(f"s_add_u32 s{sWB}, s{sWB}, s{sT[0]}")
    if with_wave:
        e(f"s_mul_i32 s{sT[0]}, s{sW}, {32 * 1280}")
        e(f"s_add_u32 s{sXB}, s{sXB}, s{sT[0]}")
        e(f"s_mul_i32 s{sT[0]}, s{sW}, {16 * 3456}")
        e(f"s_add_u32 s{sWB}, s{sWB}, s{sT[0]}")
    adv_stage()


def adv_stage():
    e(f"s_add_u32 s{sST}, s{sST}, 1")
    e(f"s_cmp_eq_u32 s{sST}, 10")
    e(f"s_cselect_b32 s{sST}, 0, s{sST}")


def stage_dma_ops(buf, w=None):
    ops = []
    for j in range(4):
        if w is None:
            ops.append(lambda j=j: dma(sXB, 8 * j * 1280, sLB, buf + j * 1024, vDX + (j & 1), rX))
            ops.append(lambda j=j: dma(sWB, 4 * j * 3456, sLB, buf + 16384 + j * 1024, vDW + (j >> 1), rW))
        else:
            ops.append(lambda j=j: dma(sXB, (32 * w + 8 * j) * 1280, None, buf + w * 4096 + j * 1024, vDX + (j & 1), rX))
            ops.append(lambda j=j: dma(sWB, (16 * w + 4 * j) * 3456, None, buf + 16384 + w * 4096 + j * 1024, vDW + (j >> 1), rW))
    return ops


def set_srds(wptr):
    for r, p in ((rX, pU), (rW, wptr), (rWS, pWS), (rOUT, pOUT), (rST, pWS)):
        e(f"s_mov_b32 s{r}, s{p}")
        e(f"s_mov_b32 s{r + 1}, s{p + 1}")


def g1_frag_addrs():
    e(f"s_and_b32 s{sT[0]}, s{sW}, 1")
    e(f"s_lshl_b32 s{sT[0]}, s{sT[0]}, 13")
    e(f"v_lshrrev_b32 v{vTMP}, 1, v{vI}")
    e(f"v_xor_b32 v{vTMP}, v{vTMP}, v{vG}")
    e(f"v_lshlrev_b32 v{vTM2}, 7, v{vI}")
    e(f"v_add_u32 v{vTM2}, s{sT[0]}, v{vTM2}")
    e(f"v_lshl_add_u32 v{vXA}, v{vTMP}, 4, v{vTM2}")
    e(f"v_xor_b32 v{vXA + 1}, 64, v{vXA}")
    e(f"v_add_u32 v{vXA + 2}, 0x10000, v{vXA}")
    e(f"v_add_u32 v{vXA + 3}, 0x10000, v{vXA + 1}")
    e(f"s_lshr_b32 s{sT[1]}, s{sW}, 1")
    e(f"s_lshl_b32 s{sT[1]}, s{sT[1]}, 2")
    for i in range(4):
        tr_addr(vTA + i, sT[1], i)
        e(f"v_add_u32 v{vTA + 4 + i}, 0x10000, v{vTA + i}")


stage_bases(True)
e.wl()
stamp(2)
set_srds(pW1)
e(f"s_cmp_eq_u32 s{sW}, 3")
e("s_cbranch_scc1 Lbeta")
st_ab = e.state()

PR = 57
tP = [e.v(f"global_load_dword v{PR + i}, v56, {S(p, 2)}") for i, p in enumerate((pARE, pAIM, pBRE, pBIM, pCRE, pCIM))]
e(f"s_and_b32 s{sT[0]}, s{sCH}, 0xfffe")
e(f"s_lshl_b32 s{sT[0]}, s{sT[0]}, 1")
e.s(f"s_load_dword s{sLDT}, {S(pLDT, 2)}, s{sT[0]}")
e.s(f"s_load_dword s{sDSK}, {S(pDSK, 2)}, s{sT[0]}")
for op in stage_dma_ops(0):
    op()
adv_stage()
adv_stage()
g1_frag_addrs()
e("v_mov_b32 v64, 0"); e("v_mov_b32 v65, 0"); e("v_mov_b32 v66, 0"); e("v_mov_b32 v67, 0")
e(f"v_add_u32 v63, s{sSSM}, v{vL16}")
for i in range(3):
    e.d(f"ds_write_b128 v63, v[64:67] offset:{K_E + i * 1024}")
e(f"v_lshlrev_b32 v{vTMP}, 3, v{vLANE}")
vSTW, vSTR = 44, 45
e(f"v_add_u32 v{vSTW}, s{sSSM}, v{vTMP}")
e.d(f"ds_write_b64 v{vSTW}, v[64:65] offset:{K_E + 3072}")
e(f"v_mul_u32_u24 v{vTMP}, 544, v{vI}")
e(f"v_lshl_add_u32 v{vTMP}, v{vG}, 4, v{vTMP}")
e(f"v_add_u32 v{vSTR}, s{sSSM}, v{vTMP}")
e(f"s_mov_b32 s{sC1}, 0x3f800000")
e(f"s_mov_b32 s{sC2}, 0xffff0000")
e(f"v_lshlrev_b32 v68, 3, v{vG}")
for bi, (lo, wd) in enumerate(((11, 3), (6, 5), (5, 7), (4, 9), (12, 2))):
    e(f"v_add_u32 v{vTMP}, {lo}, v{vI}")
    e(f"v_bfm_b32 v{vTMP}, {wd}, v{vTMP}")
    e(f"v_lshrrev_b32 v{vTMP}, v68, v{vTMP}")
    for jj in range(4):
        e(f"v_bfe_i32 v69, v{vTMP}, {2 * jj}, 1")
        e(f"v_bfe_i32 v70, v{vTMP}, {2 * jj + 1}, 1")
        e(f"v_and_b32 v69, {'0x3f80' if bi < 4 else '0xffff'}, v69")
        e(f"v_and_or_b32 v{vBAND + 4 * bi + jj}, v70, s{sC1 if bi < 4 else sC2}, v69")
e.wl()
for sx in (sLDT, sDSK):
    e(f"s_lshl_b32 s{sT[0]}, s{sx}, 16")
    e(f"s_and_b32 s{sT[1]}, s{sx}, 0xffff0000")
    e(f"s_bitcmp1_b32 s{sCH}, 0")
    e(f"s_cselect_b32 s{sx}, s{sT[1]}, s{sT[0]}")
vDT = 64
e(f"v_mov_b32 v66, s{sLDT}")
e("v_mul_f32 v67, 0x3fb8aa3b, v66")
e("v_fmac_f32 v67, 0x32a5705f, v66")
e("v_exp_f32 v67, v67")
e("v_cvt_pk_bf16_f32 v67, v67, v67")
e(f"v_lshlrev_b32 v{vDT}, 16, v67")
e(f"v_mov_b32 v{vDT + 1}, v{vDT}")

pool = list(range(72, 256, 2))


def alloc():
    return pool.pop(0)


def free(r):
    pool.append(r)


def cmul(z, q, conj=False, dst=None):
    d = alloc() if dst is None else dst
    return d, [f"v_pk_mul_f32 {V(d, 2)}, {V(z, 2)}, {V(q, 2)} op_sel:[0,0] op_sel_hi:[1,0]",
               f"v_pk_fma_f32 {V(d, 2)}, {V(z, 2)}, {V(q, 2)}, {V(d, 2)} op_sel:[1,1,0] op_sel_hi:[0,1,1] {'neg_hi' if conj else 'neg_lo'}:[1,0,0]"]


def cmul2(z, q, conj=False):
    d0, c0 = cmul(z[0], q[0], conj)
    d1, c1 = cmul(z[1], q[1], conj)
    for x in (c0[0], c1[0], c0[1], c1[1]):
        e(x)
    return (d0, d1)


cvt_pool = [66, 68, 70]
cvt_i = [0]


def put_row(z, row):
    c = cvt_pool[cvt_i[0] % 3]
    cvt_i[0] += 1
    e(f"v_cvt_pk_bf16_f32 v{c}, v{z[0]}, v{z[0] + 1}")
    e(f"v_cvt_pk_bf16_f32 v{c + 1}, v{z[1]}, v{z[1] + 1}")
    e.d(f"ds_write_b64 v{vSTW}, {V(c, 2)} offset:{row * 544}")


def read_tile(tile):
    return [e.d(f"ds_read_b128 {A(32 * tile + 4 * k, 4)}, v{vSTR} offset:{64 * k}") for k in range(8)]


e.wv(tP[-1])
stamp(3)
AW, Bc, Cc = [], [], []
for s in range(2):
    aw, b, c = alloc(), alloc(), alloc()
    for dst, src in ((aw, PR), (aw + 1, PR + 1), (b, PR + 2), (b + 1, PR + 3), (c, PR + 4), (c + 1, PR + 5)):
        e(f"v_lshlrev_b32 v{dst}, 16, v{src}" if s == 0 else f"v_and_b32 v{dst}, 0xffff0000, v{src}")
    e(f"v_pk_mul_f32 {V(aw, 2)}, {V(aw, 2)}, {V(vDT, 2)}")
    e(f"v_mul_f32 v{aw}, 0x3fb8aa3b, v{aw}")
    e(f"v_mul_f32 v{aw + 1}, 0.15915494, v{aw + 1}")
    AW.append(aw); Bc.append(b); Cc.append(c)


def direct(m):
    out = []
    tmp = []
    for s in range(2):
        d, t = alloc(), alloc()
        if m == 1:
            e(f"v_exp_f32 v{t}, v{AW[s]}")
            e(f"v_fract_f32 v{t + 1}, v{AW[s] + 1}")
        else:
            lit = {8: "0x41000000", 128: "0x43000000"}[m]
            e(f"v_mul_f32 v{t}, {lit}, v{AW[s]}")
            e(f"v_mul_f32 v{t + 1}, {lit}, v{AW[s] + 1}")
            e(f"v_exp_f32 v{t}, v{t}")
            e(f"v_fract_f32 v{t + 1}, v{t + 1}")
        out.append(d); tmp.append(t)
    for s in range(2):
        e(f"v_cos_f32 v{out[s]}, v{tmp[s] + 1}")
        e(f"v_sin_f32 v{out[s] + 1}, v{tmp[s] + 1}")
    for s in range(2):
        e(f"v_pk_mul_f32 {V(out[s], 2)}, {V(out[s], 2)}, {V(tmp[s], 2)} op_sel:[0,0] op_sel_hi:[1,0]")
        free(tmp[s])
    return tuple(out)


q8 = direct(8)
X = cmul2(Cc, Bc)
for s in range(2):
    e(f"v_pk_mul_f32 {V(X[s], 2)}, {V(X[s], 2)}, {V(vDT, 2)} neg_hi:[0,1]")
    free(Bc[s]); free(Cc[s])
E = {}
E[1] = direct(1)
q128 = direct(128)
for rho in range(16):
    put_row(X, rho)
    if rho < 15:
        Xn = cmul2(X, q8, conj=True)
        free(X[0]); free(X[1])
        X = Xn
free(X[0]); free(X[1])
tX = read_tile(0)
E[8] = q8
for l in range(2, 8):
    E[l] = cmul2(E[l - 1], E[1])
for b in range(8):
    put_row(E[1 + b], b)
    E[129 + b] = cmul2(E[1 + b], q128)
    put_row(E[129 + b], 8 + b)
    if b % 2 == 0:
        for s in range(2):
            free(E[129 + b][s])
for l in (1, 3, 5, 7):
    for s in range(2):
        free(E[l][s])
tY0 = read_tile(1)
q256 = cmul2(q128, q128)
q512 = cmul2(q256, q256)
q1024 = cmul2(q512, q512)
for c in range(2):
    for b in range(4):
        l = 258 + 128 * c + 2 * b
        E[l] = cmul2(E[l - 256], q256)
        put_row(E[l], 4 * c + b)
for c in range(4):
    for b in range(2):
        l = 516 + 128 * c + 4 * b
        E[l] = cmul2(E[l - 512], q512)
        put_row(E[l], 8 + 2 * c + b)
tY1 = read_tile(2)
for c in range(8):
    l = 1032 + 128 * c
    z = cmul2(E[l - 1024], q1024)
    put_row(z, c)
    free(z[0]); free(z[1])
e("v_mov_b32 v66, 0x3f80"); e("v_mov_b32 v67, 0x3f80")
e.d(f"ds_write_b64 v{vSTW}, v[66:67] offset:{8 * 544}")
tY2 = read_tile(3)
vA0, vA1, vA2, vA3 = 72, 73, 74, 75
e(f"v_lshrrev_b32 v{vTMP}, 1, v{vG}")
e(f"v_lshlrev_b32 v{vTMP}, 8, v{vTMP}")
e(f"v_lshl_add_u32 v{vTMP}, v{vI}, 4, v{vTMP}")
e(f"v_and_b32 v{vTM2}, 1, v{vG}")
e(f"v_lshl_add_u32 v{vTMP}, v{vTM2}, 3, v{vTMP}")
e(f"v_sub_u32 v{vA0}, s{sSSM}, v{vTMP}")
e(f"v_lshlrev_b32 v{vTMP}, 8, v{vG}")
e(f"v_lshl_add_u32 v{vTMP}, v{vI}, 4, v{vTMP}")
e(f"v_sub_u32 v{vA1}, s{sSSM}, v{vTMP}")
e(f"v_lshrrev_b32 v{vTMP}, 1, v{vI}")
e(f"v_lshl_add_u32 v{vTMP}, v{vG}, 4, v{vTMP}")
e(f"v_lshlrev_b32 v{vTMP}, 2, v{vTMP}")
e(f"v_and_b32 v{vTM2}, 1, v{vI}")
e(f"v_lshlrev_b32 v{vTM2}, 8, v{vTM2}")
e(f"v_sub_u32 v{vTMP}, v{vTM2}, v{vTMP}")
e(f"v_add_u32 v{vA2}, s{sSSM}, v{vTMP}")
e(f"v_lshrrev_b32 v{vTMP}, 1, v{vI}")
e(f"v_lshl_add_u32 v{vTMP}, v{vG}, 5, v{vTMP}")
e(f"v_lshlrev_b32 v{vTMP}, 2, v{vTMP}")
e(f"v_and_b32 v{vTM2}, 1, v{vI}")
e(f"v_lshlrev_b32 v{vTM2}, 1, v{vTM2}")
e(f"v_sub_u32 v{vTMP}, v{vTM2}, v{vTMP}")
e(f"v_add_u32 v{vA3}, s{sSSM}, v{vTMP}")
e(f"v_mov_b32 v76, s{sSSM}")
D0, D1, D2 = 80, 84, 88
e.wl(tY1[-1])
for k in range(8):
    for t, D in ((1, D0), (2, D1)):
        e(f"{MF} {V(D, 4)}, {A(32 * t + 4 * k, 4)}, {A(4 * k, 4)}, {'0' if k == 0 else V(D, 4)}")
e.wl(tY2[-1])
for k in range(8):
    e(f"{MF} {V(D2, 4)}, {A(96 + 4 * k, 4)}, {A(4 * k, 4)}, {'0' if k == 0 else V(D2, 4)}")
e("v_mov_b32 v66, 0"); e("v_mov_b32 v67, 0")
e.d(f"ds_write_b64 v{vSTW}, v[66:67]")
e(f"v_cvt_pk_bf16_f32 v92, v{D0 + 3}, v{D0 + 2}")
e(f"v_cvt_pk_bf16_f32 v93, v{D0 + 1}, v{D0}")
e(f"v_cvt_pk_bf16_f32 v94, v{D0 + 2}, v{D0 + 1}")
e.d(f"ds_write_b64 v{vA0}, v[92:93] offset:{K_E + 2 * (544 - 4)}")
e.d(f"ds_write_b32 v{vA0}, v94 offset:{K_O + 2 * (545 - 3)}")
e.d(f"ds_write_b16_d16_hi v{vA0}, v93 offset:{K_O + 2 * (545 - 1)}")
e.d(f"ds_write_b16 v{vA0}, v92 offset:{K_O + 2 * (545 - 4)}")
setexec(0x8000000000000000)
e.d(f"ds_write_b16 v76, v92 offset:{K_E + 2 * (544 - 257)}")
e.d(f"ds_write_b16 v76, v92 offset:{K_O + 2 * (545 - 257)}")
e("s_mov_b64 exec, -1")
e(f"v_cvt_pk_bf16_f32 v96, v{D1 + 3}, v{D1 + 3}")
e(f"v_cvt_pk_bf16_f32 v97, v{D1 + 3}, v{D1 + 2}")
e(f"v_cvt_pk_bf16_f32 v98, v{D1 + 1}, v{D1 + 1}")
e(f"v_cvt_pk_bf16_f32 v99, v{D1 + 1}, v{D1}")
e(f"v_cvt_pk_bf16_f32 v100, v{D1 + 2}, v{D1 + 1}")
e(f"v_cvt_pk_bf16_f32 v101, v{D1}, v{D1 + 1}")
e(f"v_cvt_pk_bf16_f32 v102, v{D1 + 2}, v{D1 + 3}")
e(f"v_readlane_b32 s{sT[0]}, v96, 63")
setexec(0xffffffff)
e.d(f"ds_write_b128 v{vA1}, v[96:99] offset:{K_O + 2 * (545 - 265)}")
e.d(f"ds_write_b16_d16_hi v{vA1}, v99 offset:{K_E + 2 * (544 - 258)}")
e.d(f"ds_write_b32 v{vA1}, v98 offset:{K_E + 2 * (544 - 260)}")
e.d(f"ds_write_b32 v{vA1}, v100 offset:{K_E + 2 * (544 - 262)}")
e.d(f"ds_write_b32 v{vA1}, v96 offset:{K_E + 2 * (544 - 264)}")
e.d(f"ds_write_b16 v{vA1}, v96 offset:{K_E + 2 * (544 - 265)}")
setexec(0x80000000)
e.d(f"ds_write_b16 v76, v96 offset:{K_E + 2 * (544 - 514)}")
e.d(f"ds_write_b16 v76, v96 offset:{K_O + 2 * (545 - 514)}")
setexec(0xffffffff00000000)
e.d(f"ds_write_b32 v{vA2}, v101 offset:{K_S2A + 4 * 79}")
e.d(f"ds_write_b32 v{vA2}, v102 offset:{K_S2A + 4 * (79 - 8)}")
e("s_mov_b64 exec, -1")
for jj in range(4):
    e(f"v_and_b32 v{vBAND + 16 + jj}, s{sT[0]}, v{vBAND + 16 + jj}")
e(f"v_cvt_pk_bf16_f32 v92, v{D2}, v{D2 + 1}")
e(f"v_cvt_pk_bf16_f32 v93, v{D2 + 2}, v{D2 + 3}")
e(f"v_add_f32 v94, s{sDSK}, v{D2}")
e("v_cvt_pk_bf16_f32 v94, v94, v94")
setexec(0xffffffff)
e.d(f"ds_write_b16 v{vA3}, v92 offset:{K_S3 + 4 * (127 - 64)}")
e.d(f"ds_write_b16_d16_hi v{vA3}, v92 offset:{K_S3 + 4 * (127 - 72)}")
e.d(f"ds_write_b16 v{vA3}, v93 offset:{K_S3 + 4 * (127 - 80)}")
e.d(f"ds_write_b16_d16_hi v{vA3}, v93 offset:{K_S3 + 4 * (127 - 88)}")
setexec(0x100000000)
e.d(f"ds_write_b16 v76, v94 offset:{K_E + 2 * 544}")
e.d(f"ds_write_b16 v76, v94 offset:{K_O + 2 * 545}")
e("s_mov_b64 exec, -1")
stamp(4)
e.wv()
e("s_branch Lg1")

e.restore(st_ab)
e("Lbeta:")
for op in stage_dma_ops(0):
    op()
e("s_cmp_lg_u32 s2, 0")
e("s_cbranch_scc1 Lnononce")
e.raw(f"s_load_dwordx2 {S(sTAG, 2)}, {S(pWS, 2)}, 0")
e.raw("s_waitcnt lgkmcnt(0)")
e(f"s_mul_i32 s{sTAG}, s{sTAG}, 0x9e3779b1")
e(f"s_add_u32 s{sTAG}, s{sTAG}, 0x7f4a7c15")
e(f"s_mul_i32 s{sTAG + 1}, s{sTAG + 1}, 0x85ebca6b")
e(f"s_add_u32 s{sTAG + 1}, s{sTAG + 1}, s{sTAG}")
e(f"s_or_b32 s{sTAG + 1}, s{sTAG + 1}, 1")
e(f"v_mov_b32 v64, s{sTAG}")
e(f"v_mov_b32 v65, s{sTAG + 1}")
e("v_mov_b32 v66, 0")
e("s_mov_b64 exec, 1")
e.raw(f"global_store_dwordx2 v66, v[64:65], {S(pDBG, 2)} {SC}")
e.raw(f"global_store_dwordx2 v66, v[64:65], {S(pWS, 2)} {SC}")
e("s_mov_b64 exec, -1")
e("Lnononce:")
g1_frag_addrs()
for s in (1, 2):
    stage_bases(False)
    for w in range(4):
        for op in stage_dma_ops(s * RING, w):
            op()
stamp(4)
e.raw("s_waitcnt vmcnt(63)")

e("Lg1:")
e.join()
ACC = 64
FA, FB = (128, 160), (144, 176)
vFL = 56
vFA = 58
UTR = 192


def g1_reads(n):
    s, kk = divmod(n, 2)
    b = s % 3
    st, off = (1, 0) if b == 2 else (0, b * RING)
    ops = []
    p = n & 1
    for i in range(4):
        ops.append(lambda i=i: e.d(f"ds_read_b128 {V(FB[p] + 4 * i, 4)}, v{vXA + 2 * st + kk} offset:{off + i * 2048}"))
        for hh in range(2):
            ops.append(lambda i=i, hh=hh: e.d(f"ds_read_b64_tr_b16 {V(FA[p] + 4 * i + 2 * hh, 2)}, v{vTA + 4 * st + i} offset:{off + 16384 + kk * 8192 + hh * 1024}"))
    return ops


e("s_barrier")
stamp(5)
for op in g1_reads(0):
    op()
tag_load = f"global_load_dwordx2 {V(vFL, 2)}, v{vFA}, {S(pDBG, 2)} {SC}"
p0_load = f"buffer_load_dwordx2 {V(vFL, 2)}, v{vFA}, {S(rWS, 4)}, 0 offen {SC}"
stage_tk = {}
nw2 = 0
for n in range(20):
    s, kk = divmod(n, 2)
    p = n & 1
    e.wl()
    fill = []
    if kk == 1 and s + 1 < 10:
        if s + 1 == 1:
            e.raw("s_waitcnt vmcnt(32)")
        elif s + 1 == 2:
            e.raw("s_waitcnt vmcnt(8)")
        else:
            e.wv(stage_tk[s + 1])
        e("s_barrier")
        if s + 3 < 10:
            stage_bases(True)
            ops = stage_dma_ops((s % 3) * RING)

            def last(op=ops[-1], s=s):
                stage_tk[s + 3] = op()
            e.bg += ops[:-1] + [last]
    if n == 9:
        e(f"v_mov_b32 v{vFA}, 0")
        tk_tag = e.v(tag_load)
    if n == 12:
        get_tag(vFL, tk_tag, tag_load)
        e(f"v_min_u32 v{vFA}, 58, v{vLANE}")
        e(f"v_lshlrev_b32 v{vFA}, 6, v{vFA}")
        e(f"v_add_u32 v{vFA}, {WS_FP0}, v{vFA}")
        tk_p0 = e.v(p0_load)
    if n == 15:
        spin_check(p0_load, vFL, tk_p0)
        e(f"s_lshl_b32 s{sT[0]}, s{sCH}, 12")
        e(f"s_add_u32 s{sT[0]}, s{sT[0]}, {WS_UT}")
        tUT = [e.v(f"buffer_load_dwordx4 {V(UTR + 4 * j, 4)}, v{vL16}, {S(rWS, 4)}, s{sT[0]} offen offset:{1024 * j} sc1") for j in range(4)]
        for k in range(16):
            e.bg.append(lambda k=k: w2_load(k))
        nw2 = 16
    rd = g1_reads(n + 1) if n + 1 < 20 else []
    k = 0
    for i in range(4):
        for j in range(4):
            a = ACC + 16 * i + 4 * j
            e(f"{MF} {V(a, 4)}, {V(FA[p] + 4 * i, 4)}, {V(FB[p] + 4 * j, 4)}, {'0' if n == 0 else V(a, 4)}")
            if rd:
                rd.pop(0)()
            if k % 4 == 3:
                e.tick()
            k += 1
e.flush_bg()
stamp(6)
e(f"s_and_b32 s{sT[0]}, s{sW}, 1")
e(f"s_lshl1_add_u32 s{sT[0]}, s{sRB}, s{sT[0]}")
e(f"s_mul_i32 s{sT[1]}, s{sT[0]}, {4 * 55296}")
e(f"s_lshr_b32 s{sT[2]}, s{sW}, 1")
e(f"s_lshl1_add_u32 s{sT[2]}, s{sCB}, s{sT[2]}")
e(f"s_lshl_b32 s{sT[3]}, s{sT[2]}, 11")
e(f"s_add_u32 s{sT[1]}, s{sT[1]}, s{sT[3]}")
e(f"s_add_u32 s{sT[1]}, s{sT[1]}, {WS_HF}")
sHFL = 93
e(f"s_lshl_b32 s{sT[0]}, s{sT[0]}, 5")
e(f"s_add_u32 s{sT[0]}, s{sT[0]}, s{sT[2]}")
e(f"s_lshl_b32 s{sT[0]}, s{sT[0]}, 6")
e(f"s_add_u32 s{sHFL}, s{sT[0]}, {WS_FH}")
for j in range(4):
    for pr in range(2):
        o = 128 + 4 * (2 * j + pr)
        for h in range(2):
            a = ACC + 16 * (2 * pr + h) + 4 * j
            e(f"v_cvt_pk_bf16_f32 v{o + 2 * h}, v{a}, v{a + 1}")
            e(f"v_cvt_pk_bf16_f32 v{o + 2 * h + 1}, v{a + 2}, v{a + 3}")
        for q in range(4):
            e(f"v_pk_max_i16 v{o + q}, v{o + q}, 0")
        if pr == 0 and j > 0:
            e(f"s_add_u32 s{sT[1]}, s{sT[1]}, 55296")
        tH = e.v(f"buffer_store_dwordx4 {V(o, 4)}, v{vL16}, {S(rST, 4)}, s{sT[1]} offen offset:{1024 * pr} {SC}")
e("s_barrier")
stamp(7)
e(f"s_cmp_eq_u32 s{sW}, 3")
e("s_cbranch_scc1 Lbeta2")
st_post = e.state()

for k in range(nw2, 65):
    e.bg.append(lambda k=k: w2_load(k))
vUA, vTE, vTE2, vS, vYW, vYR = 44, 45, 46, 47, 48, 49
CA, TF, UF, WO = 64, 96, 208, 228
T2, T3 = 164, 8
e(f"v_add_u32 v{vYR}, s{sSSM}, v{vL16}")
e.wv(tUT[-1])
for j in range(4):
    e.d(f"ds_write_b128 v{vYR}, {V(UTR + 4 * j, 4)} offset:{512 + 1024 * j}")
e(f"v_lshlrev_b32 v{vTMP}, 5, v{vI}")
e(f"v_lshl_add_u32 v{vTM2}, v{vG}, 4, v{vTMP}")
e(f"v_add_u32 v{vUA}, s{sSSM}, v{vTM2}")
e(f"v_lshl_add_u32 v{vTM2}, v{vG}, 3, v{vTMP}")
e(f"v_add_u32 v{vYW}, s{sSSM}, v{vTM2}")
e(f"v_lshrrev_b32 v{vTMP}, 1, v{vI}")
e(f"v_lshlrev_b32 v{vTM2}, 2, v{vG}")
e(f"v_sub_u32 v{vTMP}, v{vTM2}, v{vTMP}")
e(f"v_lshlrev_b32 v{vTMP}, 2, v{vTMP}")
e(f"v_and_b32 v{vTE}, 1, v{vI}")
e(f"v_mul_u32_u24 v{vTE}, {K_O - K_E}, v{vTE}")
e(f"v_add3_u32 v{vTE}, v{vTE}, v{vTMP}, s{sSSM}")
e(f"v_add_u32 v{vTE}, {K_E + 28}, v{vTE}")
e(f"v_add_u32 v{vTE2}, 512, v{vTE}")
e(f"v_sub_u32 v{vTMP}, v{vTM2}, v{vI}")
e(f"v_lshlrev_b32 v{vTMP}, 2, v{vTMP}")
e(f"v_add_u32 v{vTMP}, {K_S2A + 60}, v{vTMP}")
e(f"v_add_u32 v{vS}, s{sSSM}, v{vTMP}")


def rd2(dst, addr, o):
    e.d(f"ds_read2_b32 {V(dst, 2)}, v{addr} offset0:{o} offset1:{o + 1}")
    return e.d(f"ds_read2_b32 {V(dst + 2, 2)}, v{addr} offset0:{o + 2} offset1:{o + 3}")


tT = {}


def t_read(q):
    o = 257 - 16 * q
    tT[q] = rd2(TF + 4 * q, vTE, o) if o + 3 <= 255 else rd2(TF + 4 * q, vTE2, o - 128)


useq = []
for i in range(-7, 57):
    useq.append(("U", i))
    if i >= 0 and i % 8 == 0 and i // 8 <= 5:
        useq.append(("P", i // 8))
tU = {}


def u_read(k):
    kind, i = useq[k]
    off = 480 + 64 * i if kind == "U" else 2 * (256 + 256 * i - 24)
    tU[k] = e.d(f"ds_read_b128 {V(UF + 4 * (k % 5), 4)}, v{vUA} offset:{off}")


for q in (7, 15):
    t_read(q)
for k in range(4):
    u_read(k)
side = []
for q in (6, 14, 5, 13, 4, 12, 3, 11, 2, 10, 1, 9, 0, 8, 16):
    side.append(lambda q=q: t_read(q))
tF = {}
for ab in range(2):
    for dl in (2, 3, 4):
        side.append(lambda ab=ab, dl=dl: tF.__setitem__((ab, dl), rd2(T2 + 4 * (3 * ab + dl - 2), vS, 64 * ab + 64 - 16 * dl)))
for dl in (4, 5, 6, 7):
    side.append(lambda dl=dl: tF.__setitem__((2, dl), rd2(T3 + 4 * (dl - 4), vS, 128 + 112 - 16 * dl)))

touched = set()
nmf = [0]
later = []


def mfma(acc, a, b, key=None):
    first = key is not None and key not in touched
    if key is not None:
        touched.add(key)
    c = "0" if (first or key is None) else V(acc, 4)
    e(f"{MF} {V(acc, 4)}, {a}, {b}, {c}")
    nmf[0] += 1
    if side:
        side.pop(0)()
    if nmf[0] % 4 == 0:
        e.tick()
    if nmf[0] == OPT["hflag_at"]:
        e.wv(tH)
        store_flag(rST, sHFL, vFL)
    for _ in range(2):
        if later and later[0][0] <= nmf[0] and later[0][2] == "v":
            later.pop(0)[1]()


def run_later_mfma():
    k = 0
    while later and later[0][0] <= nmf[0] and later[0][2] == "m" and k < 3:
        later.pop(0)[1]()
        k += 1


def finish_tile(a):
    def f():
        r = CA + 4 * a
        e(f"v_cvt_pk_bf16_f32 v{r}, v{r}, v{r + 1}")
        e(f"v_cvt_pk_bf16_f32 v{r + 1}, v{r + 2}, v{r + 3}")
        e.d(f"ds_write_b64 v{vYW}, {V(r, 2)} offset:{4608 + 512 * a}")
    return f


for k, (kind, i) in enumerate(useq):
    if k + 4 < len(useq):
        u_read(k + 4)
    e.wl(tU[k])
    u = V(UF + 4 * (k % 5), 4)
    if kind == "U":
        for a in range(8):
            q = 8 * a - i
            if 0 <= q <= 16:
                e.wl(tT[q])
                mfma(CA + 4 * a, V(TF + 4 * q, 4), u, key=a)
        if i >= 0 and i % 8 == 0:
            C = i // 8
            if C <= 3:
                mfma(CA + 4 * (C + 4), V(vBAND + 16, 4), u, key=C + 4)
            if C <= 5:
                assert not later, "window regs still in use"
                mfma(WO, u, V(vBAND, 4))
                mfma(WO + 4, u, V(vBAND + 4, 4))
                if C <= 3:
                    mfma(WO + 16, u, V(vBAND + 8, 4))
            else:
                later.append((nmf[0] + 3, finish_tile(C), "v"))
    else:
        C = i
        mfma(WO + 8, u, V(vBAND, 4))
        mfma(WO + 12, u, V(vBAND + 4, 4))
        if C <= 3:
            mfma(WO + 20, u, V(vBAND + 12, 4))
        t0 = nmf[0] + 3
        later.append((nmf[0], finish_tile(C), "v"))
        for z in range(3 if C <= 3 else 2):
            for r in range(4):
                later.append((t0 - (2 if z == 0 else 0), lambda z=z, r=r: e(f"v_cvt_pk_bf16_f32 v{WO + 8 * z + r}, v{WO + 8 * z + r}, v{WO + 8 * z + 4 + r}"), "v"))
            for dl in ((2, 3, 4) if z < 2 else (4, 5, 6, 7)):
                if C + dl <= 7:
                    def far(z=z, dl=dl, C=C):
                        e.wl(tF[(z, dl)])
                        tr = T2 + 4 * (3 * z + dl - 2) if z < 2 else T3 + 4 * (dl - 4)
                        mfma(CA + 4 * (C + dl), V(WO + 8 * z, 4), V(tr, 4), key=C + dl)
                    later.append((t0, far, "m"))
    run_later_mfma()
while later:
    later.pop(0)[1]()
print("conv mfma:", nmf[0], file=sys.stderr)
e.flush_bg()
tY = [e.d(f"ds_read_b128 {V(96 + 4 * j, 4)}, v{vYR} offset:{4608 + 1024 * j}") for j in range(4)]
e(f"s_mov_b32 s{rST + 2}, s{sYOK}")
e(f"s_lshl_b32 s{sT[0]}, s{sCH}, 12")
e(f"s_add_u32 s{sT[0]}, s{sT[0]}, {WS_YT}")
for j in range(4):
    e.wl(tY[j])
    e.v(f"buffer_store_dwordx4 {V(96 + 4 * j, 4)}, v{vL16}, {S(rST, 4)}, s{sT[0]} offen offset:{1024 * j} {SC}")
sYFL = 93
e(f"s_lshl_b32 s{sYFL}, s{sCH}, 6")
e(f"s_add_u32 s{sYFL}, s{sYFL}, {WS_FY}")
stamp(8)
e("s_branch Lg2_13")

e.restore(st_post)
e("Lbeta2:")
for k in range(nw2, 75):
    w2_load(k)
    if k == nw2 + 16:
        e.wv(tH)
        store_flag(rST, sHFL, vFL)
e(f"s_mov_b32 s{rST + 2}, 0")
stamp(8)
e("s_branch Lg2_15")

e.restore(st_entry)
e("Lfree:")
sTF, sKP = sRB, sCB
e(f"s_sub_u32 s{sT[0]}, s{sSLOT}, 28")
e(f"s_lshl2_add_u32 s{sTF}, s{sXCD}, s{sT[0]}")
wide_dma_addr(vDW, 1280)
e(f"s_mul_i32 s{sXB}, s{sTF}, {64 * 1280}")
e(f"s_lshr_b32 s{sT[0]}, s{sW}, 1")
e(f"s_lshl_b32 s{sT[0]}, s{sT[0]}, 2")
e(f"s_and_b32 s{sT[1]}, s{sW}, 1")
e(f"s_add_u32 s{sT[0]}, s{sT[0]}, s{sT[1]}")
e(f"s_mul_i32 s{sT[0]}, s{sT[0]}, {8 * 1280}")
e(f"s_add_u32 s{sWB}, s{sXB}, s{sT[0]}")
e(f"s_mul_i32 s{sT[0]}, s{sW}, {16 * 1280}")
e(f"s_add_u32 s{sXB}, s{sXB}, s{sT[0]}")
e.wl()
stamp(2)
set_srds(pW2)
L_GW, L_SCR = 147456 - 2048, 147456 - 2048 - 0
UB = [16384 * i for i in range(8)]
L_SCR = 131072
L_GW = 131072 + 4 * 4608
e(f"v_min_u32 v{vTMP}, 0x4f0, v{vL16}")
tg0 = e.v(f"global_load_dwordx4 v[64:67], v{vL16}, {S(pGW, 2)}")
e(f"v_add_u32 v{vTM2}, 1024, v{vL16}")
e(f"v_min_u32 v68, 0x4f0, v{vTM2}")
tg1 = e.v(f"global_load_dwordx4 v[72:75], v68, {S(pGW, 2)}")
utk = {}


def unit_dma(u):
    buf = UB[u % 8]
    for j in range(4):
        if u < 5:
            utk[u] = dma(sXB, 4 * j * 1280 + 256 * u, sLB, buf + j * 1024, vDW + (j >> 1), rX)
        else:
            utk[u] = dma(sWB, (4 * (j >> 1) + 16 * (j & 1)) * 1280 + 256 * (u - 5), sLB, buf + j * 1024, vDW + (j >> 1), rW)


for u in range(3):
    unit_dma(u)
e(f"s_lshl_b32 s{sT[1]}, s{sW}, 1")
for i in range(2):
    tr_addr(vTA + i, sT[1], i)
    e(f"v_add_u32 v{vTA + 2 + i}, 0x10000, v{vTA + i}")
vSW, vSR, vUS, vGX, vGG = 44, 45, 46, 47, 49
e(f"s_mul_i32 s{sT[0]}, s{sW}, 4608")
e(f"s_add_u32 s{sT[0]}, s{sT[0]}, {L_SCR}")
e(f"v_mul_u32_u24 v{vTMP}, 144, v{vI}")
e(f"v_lshl_add_u32 v{vTMP}, v{vG}, 4, v{vTMP}")
e(f"v_add_u32 v{vSW}, s{sT[0]}, v{vTMP}")
e(f"v_lshrrev_b32 v{vTMP}, 3, v{vLANE}")
e(f"v_and_b32 v{vTM2}, 7, v{vLANE}")
e(f"v_lshlrev_b32 v{vTM2}, 4, v{vTM2}")
e(f"v_lshl_add_u32 v{vUS}, v{vTMP}, 12, v{vTM2}")
e(f"v_mul_u32_u24 v{vTMP}, 144, v{vTMP}")
e(f"v_add3_u32 v{vSR}, v{vTMP}, v{vTM2}, s{sT[0]}")
e(f"v_and_b32 v{vTMP}, 3, v{vI}")
e(f"v_bfe_u32 v{vTM2}, v{vI}, 3, 1")
e(f"v_lshl_or_b32 v{vTMP}, v{vTM2}, 2, v{vTMP}")
e(f"v_lshlrev_b32 v{vTMP}, 1, v{vTMP}")
e(f"v_xor_b32 v{vTMP}, v{vTMP}, v{vG}")
e(f"v_lshlrev_b32 v{vTMP}, 4, v{vTMP}")
e(f"v_lshl_add_u32 v{vTMP}, v{vI}, 8, v{vTMP}")
e(f"v_add_u32 v{vGX}, s{sLB}, v{vTMP}")
e(f"v_lshlrev_b32 v{vGG}, 4, v{vG}")
e(f"v_add_u32 v{vGG}, {L_GW}, v{vGG}")
e(f"v_add_u32 v69, {L_GW}, v{vL16}")
e(f"v_add_u32 v68, {L_GW}, v68")
e.wv(tg1)
e.d("ds_write_b128 v69, v[64:67]")
e.d("ds_write_b128 v68, v[72:75]")
e(f"v_mov_b32 v{vFA}, 0")
GACC = 80
for u in range(10):
    if u + 3 < 10 and u + 3 < 8:
        unit_dma(u + 3)
    if u == 3:
        tk_tag = e.v(tag_load)
    e.wv(utk[u])
    e.wl()
    e("s_barrier")
    if 8 <= u + 3 < 10:
        unit_dma(u + 3)
    buf = UB[u % 8]
    st, off = (1, buf - 65536) if buf >= 65536 else (0, buf)
    F = 96 + 16 * (u & 1)
    tk = []
    for i in range(2):
        for kk in range(2):
            for hh in range(2):
                tk.append(e.d(f"ds_read_b64_tr_b16 {V(F + 8 * i + 4 * kk + 2 * hh, 2)}, v{vTA + 2 * st + i} offset:{off + kk * 8192 + hh * 1024}"))
    if u < 5:
        gt = []
        for k4 in range(4):
            e(f"v_xor_b32 v{vTMP}, {64 * k4}, v{vGX}")
            e(f"v_add_u32 v{vTMP}, {buf}, v{vTMP}")
            e.d(f"ds_read_b128 {V(128 + 8 * k4, 4)}, v{vTMP}")
            gt.append(e.d(f"ds_read_b128 {V(132 + 8 * k4, 4)}, v{vGG} offset:{256 * u + 64 * k4}"))
        e.wl(tk[-1])
        for i in range(2):
            for kk in range(2):
                e.d(f"ds_write_b128 v{vSW}, {V(F + 8 * i + 4 * kk, 4)} offset:{i * 2304 + kk * 64}")
        O = 160 + 16 * (u & 1)
        tr = [e.d(f"ds_read_b128 {V(O + 4 * j, 4)}, v{vSR} offset:{j * 1152}") for j in range(4)]
        for k4 in range(4):
            e.wl(gt[k4])
            e(f"{MF} {V(GACC, 4)}, {V(132 + 8 * k4, 4)}, {V(128 + 8 * k4, 4)}, {'0' if u == 0 and k4 == 0 else V(GACC, 4)}")
        e(f"s_lshl_b32 s{sT[0]}, s{sW}, 17")
        e(f"s_lshl_b32 s{sT[1]}, s{sTF}, 7")
        e(f"s_add_u32 s{sT[0]}, s{sT[0]}, s{sT[1]}")
        for j in range(4):
            e(f"s_add_u32 s{sT[1]}, s{sT[0]}, {WS_UT + (128 * u + 8 * j) * 4096}")
            e.wl(tr[j])
            tS = e.v(f"buffer_store_dwordx4 {V(O + 4 * j, 4)}, v{vUS}, {S(rWS, 4)}, s{sT[1]} offen {SC}")
        if u == 4:
            e(f"v_mul_f32 v{GACC}, 0xbfb8aa3b, v{GACC}")
            e(f"v_exp_f32 v{GACC}, v{GACC}")
            e(f"v_add_f32 v{GACC}, 1.0, v{GACC}")
            e(f"v_rcp_f32 v{GACC}, v{GACC}")
            e(f"v_lshlrev_b32 v{vTMP}, 2, v{vLANE}")
            e(f"s_lshl2_add_u32 s{sT[0]}, s{sTF}, s{sW}")
            e(f"s_lshl_b32 s{sT[0]}, s{sT[0]}, 6")
            e(f"s_add_u32 s{sT[0]}, s{sT[0]}, {WS_G}")
            setexec(0xffff)
            tS = e.v(f"buffer_store_dword v{GACC}, v{vTMP}, {S(rWS, 4)}, s{sT[0]} offen {SC}")
            e("s_mov_b64 exec, -1")
            tS_ut = tS
            get_tag(vFL, tk_tag, tag_load)
            e(f"s_cmp_lt_u32 s{sTF}, 27")
            e(f"s_cselect_b32 s{rST + 2}, {WS_SIZE}, 0")
    else:
        e(f"s_mul_i32 s{sT[0]}, s{sW}, {2 * 55296}")
        e(f"s_lshl_b32 s{sT[1]}, s{sTF}, 11")
        e(f"s_add_u32 s{sT[0]}, s{sT[0]}, s{sT[1]}")
        for i in range(2):
            e(f"s_add_u32 s{sT[1]}, s{sT[0]}, {WS_W2F + (8 * (u - 5) + i) * 55296}")
            for kk in range(2):
                e.wl(tk[4 * i + 2 * kk + 1])
                tS = e.v(f"buffer_store_dwordx4 {V(F + 8 * i + 4 * kk, 4)}, v{vL16}, {S(rST, 4)}, s{sT[1]} offen offset:{1024 * kk} {SC}")
        if u == 6:
            e.wv(tS_ut)
        if u == 7:
            e(f"s_lshl_b32 s{sT[0]}, s{sTF}, 6")
            e(f"s_add_u32 s{sT[0]}, s{sT[0]}, {WS_FP0}")
            lab = e.label("Lnf")
            e(f"s_cmp_lg_u32 s{sW}, 0")
            e(f"s_cbranch_scc1 {lab}")
            sv = e.state()
            store_flag(rWS, sT[0], vFL)
            e.restore(sv)
            e(f"{lab}:")
            stamp(3)
e.wv()
e("s_barrier")
e(f"s_lshl_b32 s{sT[0]}, s{sTF}, 6")
e(f"s_add_u32 s{sT[0]}, s{sT[0]}, {WS_FP0 + 32 * 64}")
lab = e.label("Lnf")
e(f"s_cmp_lg_u32 s{sW}, 0")
e(f"s_cbranch_scc1 {lab}")
sv = e.state()
store_flag(rST, sT[0], vFL)
e.restore(sv)
e(f"{lab}:")
stamp(4)
e(f"v_min_u32 v{vFA}, 58, v{vLANE}")
e(f"v_lshlrev_b32 v{vFA}, 6, v{vFA}")
e(f"v_add_u32 v{vFA}, {WS_FP0}, v{vFA}")
tk = e.v(p0_load)
spin_check(p0_load, vFL, tk)
stamp(5)
for k in range(65):
    w2_load(k)
e(f"s_mov_b32 s{rST + 2}, 0")
e(f"s_mov_b32 s{sYFL}, 0")
e(f"s_cmp_lg_u32 s{sW}, 3")
e("s_cbranch_scc1 Lg2_13")
for k in range(65, 75):
    w2_load(k)
e("s_branch Lg2_15")


def g2(NK):
    e(f"Lg2_{NK}:")
    tAll = e.join()
    HR, NR = 64, 16
    AC = (128, 148)
    PRE, AT_, YL = 168, 188, 198
    vPW, vG_, vOM = 44, 45, 46
    vOW, vOR, vOG = 47, 48, 51
    e(f"v_min_u32 v{vFA}, 26, v{vLANE}")
    e(f"v_lshlrev_b32 v{vFA}, 6, v{vFA}")
    e(f"s_lshl_b32 s{sT[0]}, s{sTB}, 11")
    e(f"s_add_u32 s{sT[0]}, s{sT[0]}, {WS_FH}")
    e(f"v_add_u32 v{vFA}, s{sT[0]}, v{vFA}")
    tk = e.v(p0_load)
    e.wv(tAll)
    store_flag(rST, sYFL, 60)
    spin_check(p0_load, vFL, tk)
    stamp(9)
    sM = [sT[0], sT[1], sT[2], sT[3]]
    sHBp = [13, 14, 15, sHB]
    for p in range(4):
        e(f"s_add_u32 s{sM[p]}, s{sW}, {p + 1}")
        e(f"s_and_b32 s{sM[p]}, s{sM[p]}, 3")
        e(f"s_lshl2_add_u32 s{sHBp[p]}, s{sTB}, s{sM[p]}")
        e(f"s_mul_i32 s{sHBp[p]}, s{sHBp[p]}, 55296")
        e(f"s_mul_i32 s{sT[4]}, s{sW}, {13 * 1024}")
        e(f"s_add_u32 s{sHBp[p]}, s{sHBp[p]}, s{sT[4]}")
        e(f"s_add_u32 s{sHBp[p]}, s{sHBp[p]}, {WS_HF}")
    tHl = {}
    NT = 4 * NK

    def h_load(x):
        p, ksl = divmod(x, NK)
        e(f"s_add_u32 s{sT[4]}, s{sHBp[p]}, {ksl * 1024}")
        tHl[x] = e.v(f"buffer_load_dwordx4 {V(HR + 4 * (x % NR), 4)}, v{vL16}, {S(rWS, 4)}, s{sT[4]} offen sc1")

    PF = NR - 1
    for x in range(PF):
        h_load(x)
    for p in range(3):
        e(f"s_mul_i32 s{sT[4]}, s{sM[p]}, {3 * 5120}")
        e(f"s_add_u32 s{sT[4]}, s{sT[4]}, {L_PART + p * 5120}")
        e(f"v_add_u32 v{8 + p}, s{sT[4]}, v{vL16}")
    e(f"s_mul_i32 s{sT[4]}, s{sW}, {3 * 5120}")
    e(f"v_add_u32 v11, s{sT[4]}, v{vL16}")
    fill = []
    st = {}

    def F(fn):
        fill.append(fn)

    def ins(s):
        F(lambda: e(s))

    for x in range(NT):
        p, ksl = divmod(x, NK)
        acc = AC[p & 1]
        if ksl == 0 and p >= 1:
            pa = AC[(p - 1) & 1]
            wr = [lambda d=d, pa=pa, p=p: e.d(f"ds_write_b128 v{8 + p - 1}, {V(pa + 4 * d, 4)} offset:{1024 * d}") for d in range(5)]
            fill[0:0] = [lambda: None, lambda: None, lambda: None] + wr
        if p == 1 and ksl == 2:
            ins(f"s_mul_i32 s{sM[0]}, s{sDB}, 80")
            ins(f"s_mul_i32 s{sM[1]}, s{sW}, 20")
            ins(f"s_add_u32 s{sM[0]}, s{sM[0]}, s{sM[1]}")
            ins(f"v_min_u32 v{vFA}, 19, v{vLANE}")
            ins(f"v_add_u32 v{vFA}, s{sM[0]}, v{vFA}")
            ins(f"v_lshlrev_b32 v{vFA}, 6, v{vFA}")
            ins(f"v_add_u32 v{vFA}, {WS_FY}, v{vFA}")
            ins(f"s_lshl_b32 s{sM[0]}, s{sM[0]}, 12")
            ins(f"s_lshl_b32 s{sM[2]}, s{sTB}, 7")
            ins(f"s_add_u32 s{sM[0]}, s{sM[0]}, s{sM[2]}")
            ins(f"s_add_u32 s{sM[0]}, s{sM[0]}, {WS_YT}")
            ins(f"v_lshrrev_b32 v{vTMP}, 3, v{vLANE}")
            ins(f"v_and_b32 v{vTM2}, 7, v{vLANE}")
            ins(f"v_lshlrev_b32 v{vTM2}, 4, v{vTM2}")
            ins(f"v_lshl_add_u32 v12, v{vTMP}, 12, v{vTM2}")
            ins(f"v_add_u32 v{vTMP}, s{sM[1]}, v{vTMP}")
            ins(f"v_mul_u32_u24 v{vTMP}, 160, v{vTMP}")
            ins(f"v_add_u32 v13, v{vTMP}, v{vTM2}")
            ins(f"v_lshrrev_b32 v{vTMP}, 2, v{vI}")
            ins(f"v_lshl_add_u32 v{vTMP}, v{vG}, 2, v{vTMP}")
            ins(f"v_mul_u32_u24 v{vTMP}, 160, v{vTMP}")
            ins(f"v_and_b32 v{vTM2}, 3, v{vI}")
            ins(f"v_lshl_add_u32 v{vTMP}, v{vTM2}, 3, v{vTMP}")
            ins(f"s_lshl_b32 s{sM[2]}, s{sW}, 5")
            ins(f"s_add_u32 s{sM[2]}, s{sM[2]}, {L_AT}")
            ins(f"v_add_u32 v14, s{sM[2]}, v{vTMP}")
            ins(f"v_add_u32 v13, {L_AT}, v13")
            ins(f"s_mul_i32 s{sM[2]}, s{sW}, 2816")
            ins(f"s_add_u32 s{sM[2]}, s{sM[2]}, {L_OS}")
            ins(f"v_mul_u32_u24 v{vTMP}, 176, v{vI}")
            ins(f"v_lshl_add_u32 v{vTMP}, v{vG}, 3, v{vTMP}")
            ins(f"v_add_u32 v{vOW}, s{sM[2]}, v{vTMP}")
            for j in range(3):
                ins(f"v_add_u32 v15, {64 * j}, v{vLANE}")
                if j == 2:
                    ins("v_min_u32 v15, 159, v15")
                ins(f"v_mul_u32_u24 v{vTMP}, 6554, v15")
                ins(f"v_lshrrev_b32 v{vTMP}, 16, v{vTMP}")
                ins(f"v_mul_u32_u24 v{vTM2}, 10, v{vTMP}")
                ins(f"v_sub_u32 v{vTM2}, v15, v{vTM2}")
                ins(f"v_lshlrev_b32 v{vTM2}, 4, v{vTM2}")
                ins(f"v_mul_u32_u24 v15, 176, v{vTMP}")
                ins(f"v_add3_u32 v{vOR + j}, v15, v{vTM2}, s{sM[2]}")
                ins(f"v_mul_u32_u24 v15, 1280, v{vTMP}")
                ins(f"v_add_u32 v{vOG + j}, v15, v{vTM2}")
            ins(f"s_lshl2_add_u32 s{sM[2]}, s{sTB}, s{sW}")
            ins(f"s_mul_i32 s{sM[3]}, s{sM[2]}, {16 * 1280}")
            ins(f"s_mul_i32 s{sM[1]}, s{sDB}, 160")
            ins(f"s_add_u32 s{sM[3]}, s{sM[3]}, s{sM[1]}")
            ins(f"s_lshl_b32 s{sM[2]}, s{sM[2]}, 6")
            ins(f"s_add_u32 s{sM[2]}, s{sM[2]}, {WS_G}")
            ins(f"v_lshlrev_b32 v15, 2, v{vI}")
        if p == 2 and ksl == 0:
            assert True
        if p == 2 and ksl == 1:
            while fill:
                fill.pop(0)()
            st["fy"] = e.v(p0_load)
            st["g"] = e.v(f"buffer_load_dword v{vG_}, v15, {S(rWS, 4)}, s{sM[2]} offen sc1")
        if p == 2 and ksl == NK - 6:
            spin_check(p0_load, vFL, st["fy"])
            for j in range(3):
                if j == 2:
                    setexec(0xffffffff)
                st["y%d" % j] = e.v(f"buffer_load_dwordx4 {V(YL + 4 * j, 4)}, v12, {S(rWS, 4)}, s{sM[0]} offen sc1")
                e(f"s_add_u32 s{sM[0]}, s{sM[0]}, {8 * 4096}")
            e("s_mov_b64 exec, -1")
        if p == 3 and ksl == 3:
            while fill:
                fill.pop(0)()
            e.wv(st["y2"])
            for j in range(3):
                if j == 2:
                    setexec(0xffffffff)
                e.d(f"ds_write_b128 v13, {V(YL + 4 * j, 4)} offset:{8 * 160 * j}")
            e("s_mov_b64 exec, -1")
            e.wl()
            e("s_barrier")
            stamp(10)
            oth = AC[0]
            for d in range(5):
                F(lambda d=d: e.d(f"ds_read_b128 {V(PRE + 4 * d, 4)}, v11 offset:{L_PART + 1024 * d}"))
                F(lambda d=d: e.d(f"ds_read_b128 {V(oth + 4 * d, 4)}, v11 offset:{L_PART + 5120 + 1024 * d}"))
                F(lambda d=d: e.d(f"ds_read_b128 {V(16 + 4 * d, 4)}, v11 offset:{L_PART + 10240 + 1024 * d}"))
                F(lambda d=d: st.__setitem__("at", e.d(f"ds_read_b64_tr_b16 {V(AT_ + 2 * d, 2)}, v14 offset:{16 * 160 * d}")))
            ins(f"v_sub_f32 v{vOM}, 1.0, v{vG_}")
            F(lambda: e.wl(st["at"]))
            for r in range(20):
                ins(f"v_add_f32 v{PRE + r}, v{PRE + r}, v{oth + r}")
                ins(f"v_add_f32 v{PRE + r}, v{PRE + r}, v{16 + r}")
                a = AT_ + r // 2
                ins(f"v_lshlrev_b32 v{16 + r}, 16, v{a}" if r % 2 == 0 else f"v_and_b32 v{16 + r}, 0xffff0000, v{a}")
                ins(f"v_mul_f32 v{16 + r}, v{vG_}, v{16 + r}")
                ins(f"v_fma_f32 v{PRE + r}, v{PRE + r}, v{vOM}, v{16 + r}")
        if x + PF < NT:
            h_load(x + PF)
        e.wv(tHl[x])
        for d in range(5):
            c = "0" if ksl == 0 else V(acc + 4 * d, 4)
            e(f"{MF} {V(acc + 4 * d, 4)}, {w2_reg(5 * ksl + d)}, {V(HR + 4 * (x % NR), 4)}, {c}")
            for _ in range(2):
                if fill:
                    fill.pop(0)()
    while fill:
        fill.pop(0)()
    stamp(11)
    acc = AC[1]
    for d in range(5):
        for r in range(4):
            e(f"v_fma_f32 v{PRE + 4 * d + r}, v{acc + 4 * d + r}, v{vOM}, v{PRE + 4 * d + r}")
        e(f"v_cvt_pk_bf16_f32 v{PRE + 4 * d}, v{PRE + 4 * d}, v{PRE + 4 * d + 1}")
        e(f"v_cvt_pk_bf16_f32 v{PRE + 4 * d + 1}, v{PRE + 4 * d + 2}, v{PRE + 4 * d + 3}")
        e.d(f"ds_write_b64 v{vOW}, {V(PRE + 4 * d, 2)} offset:{32 * d}")
    to = [e.d(f"ds_read_b128 {V(64 + 4 * j, 4)}, v{vOR + j}") for j in range(3)]
    for j in range(3):
        e.wl(to[j])
        if j == 2:
            setexec(0xffffffff)
        e.v(f"buffer_store_dwordx4 {V(64 + 4 * j, 4)}, v{vOG + j}, {S(rOUT, 4)}, s{sM[3]} offen")
    e("s_mov_b64 exec, -1")
    if OPT["stamp"]:
        e.wv()
        stamp(12)
        stamp(13, rt=True)
        e(f"v_writelane_b32 v{vSTAMP}, s96, 0")
        e(f"v_writelane_b32 v{vSTAMP}, s94, 1")
        e(f"s_lshl2_add_u32 s{sT[0]}, s2, s{sW}")
        e(f"s_lshl_b32 s{sT[0]}, s{sT[0]}, 8")
        e(f"s_add_u32 s{sT[0]}, s{sT[0]}, {WS_STAMP}")
        e(f"v_lshlrev_b32 v{vTMP}, 2, v{vLANE}")
        e.v(f"buffer_store_dword v{vSTAMP}, v{vTMP}, {S(rWS, 4)}, s{sT[0]} offen")
    e("s_endpgm")


g2(13)
g2(15)
e("Lend:")
e("s_endpgm")

body, nn = insert_nops(e.L)
print("instructions:", len(body), "nops inserted:", nn, file=sys.stderr)
hdr = open("gated_mix__ssm_conv_s4__dense_activation_relu__prompt.s.ref").read().split("; Override launch")[0]
out = [hdr.rstrip("\n"),
       "; generated by work/gen.py (hand-written generator)",
       "; @launch grid=(256,1,1) block=(256,1,1) lds=163840",
       '.amdgcn_target "amdgcn-amd-amdhsa--gfx950"', ".text", f".globl {KN}", ".p2align 8", f".type {KN},@function"]
out += body
out += ['.section .rodata,"a"', ".p2align 6", f".amdhsa_kernel {KN}",
        "  .amdhsa_next_free_vgpr 512", "  .amdhsa_next_free_sgpr 102", "  .amdhsa_accum_offset 256",
        "  .amdhsa_group_segment_fixed_size 0", "  .amdhsa_kernarg_size 128", "  .amdhsa_user_sgpr_count 2",
        "  .amdhsa_user_sgpr_kernarg_segment_ptr 1", "  .amdhsa_system_sgpr_workgroup_id_x 1", ".end_amdhsa_kernel"]
open(sys.argv[1], "w").write("\n".join(out) + "\n")
```

```python
import re

REG_RE = re.compile(r"\b([vas])\[(\d+):(\d+)\]|\b([vas])(\d+)\b|\b(vcc|exec|m0)\b")
TRANS = ("v_exp_f32", "v_log_f32", "v_rcp_f32", "v_rsq_f32", "v_sqrt_f32", "v_sin_f32", "v_cos_f32")


def regs_of(op):
    out = set()
    for m in REG_RE.finditer(op):
        if m.group(1):
            for i in range(int(m.group(2)), int(m.group(3)) + 1):
                out.add(m.group(1) + str(i))
        elif m.group(4):
            out.add(m.group(4) + m.group(5))
        else:
            out.add(m.group(6))
    return out


def split_ops(rest):
    ops, depth, cur = [], 0, ""
    for ch in rest:
        if ch == "[":
            depth += 1
        elif ch == "]":
            depth -= 1
        if ch == "," and depth == 0:
            ops.append(cur.strip())
            cur = ""
        else:
            cur += ch
    if cur.strip():
        ops.append(cur.strip())
    return ops


class Ins:
    __slots__ = ("text", "mn", "defs", "uses", "kind", "srcc", "srcab", "states", "sdata")

    def __init__(self, text):
        self.text = text
        t = text.split(";")[0].strip()
        self.defs, self.uses, self.srcc, self.srcab, self.sdata = set(), set(), set(), set(), set()
        self.states = 1
        if not t or t.endswith(":") or t.startswith("."):
            self.mn, self.kind, self.states = "", "label" if t.endswith(":") else "none", 0
            return
        parts = t.split(None, 1)
        mn = self.mn = parts[0]
        rest = parts[1] if len(parts) > 1 else ""
        rest_nomod = re.sub(r"\b(op_sel|op_sel_hi|neg_lo|neg_hi|quad_perm):\[[^\]]*\]", "", rest)
        ops = split_ops(rest_nomod)
        R = [regs_of(o) for o in ops]
        allr = set().union(*R) if R else set()
        if mn.startswith("v_mfma"):
            self.kind = "mfma"
            self.defs = R[0]
            self.srcab = R[1] | R[2]
            self.srcc = R[3]
            self.uses = self.srcab | self.srcc
        elif mn.startswith("v_"):
            self.kind = "trans" if mn.replace("_e32", "").replace("_e64", "") in TRANS else "valu"
            self.defs = set(R[0])
            self.uses = set().union(*R[1:]) if len(R) > 1 else set()
            if "_co_" in mn:
                self.defs |= R[1]
            if mn.startswith(("v_fmac", "v_dot2c", "v_writelane", "v_permlane")):
                self.uses |= R[0]
            if mn.startswith("v_permlane"):
                self.defs |= R[1]
        elif mn.startswith("ds_"):
            self.kind = "ds"
            if mn.startswith(("ds_read", "ds_bpermute", "ds_permute", "ds_swizzle")):
                self.defs = R[0]
                self.uses = set().union(*R[1:])
            else:
                self.uses = allr
        elif mn.startswith(("buffer_", "global_")):
            self.kind = "vmem"
            if "_load" in mn and not re.search(r"\blds\b", rest):
                self.defs = R[0]
                self.uses = set().union(*R[1:])
            else:
                self.uses = set(allr)
                if re.search(r"\blds\b", rest):
                    self.uses.add("m0")
                    self.kind = "dma"
                if "_store" in mn and ("x4" in mn or "x3" in mn):
                    self.sdata = R[0] if mn.startswith("buffer_") else R[1]
        elif mn.startswith("s_"):
            self.kind = "salu"
            if mn == "s_nop":
                self.states = int(rest.strip(), 0) + 1
            elif mn.startswith(("s_cmp", "s_cbranch", "s_branch", "s_waitcnt", "s_barrier", "s_endpgm", "s_sleep",
                                "s_setprio", "s_bitcmp")):
                self.uses = allr
            else:
                self.defs = set(R[0]) if R else set()
                self.uses = set().union(*R[1:]) if len(R) > 1 else set()
                if "saveexec" in mn:
                    self.defs.add("exec")
        else:
            raise ValueError("unknown instruction: " + text)


def is_valu(i):
    return i.kind in ("valu", "trans")


def need_states(p, c):
    n = 0
    vec = lambda s: {r for r in s if r[0] in "va" and r != "vcc"}
    sca = lambda s: {r for r in s if r[0] == "s" or r == "vcc"}
    if is_valu(p):
        pv, ps = vec(p.defs), sca(p.defs)
        if c.kind == "mfma" and pv & c.uses:
            n = max(n, 2)
        if p.kind == "trans" and c.kind == "valu" and pv & c.uses:
            n = max(n, 1)
        if p.kind == "trans" and c.kind in ("ds", "vmem", "dma") and pv & c.uses:
            n = max(n, 1)
        if ps:
            if c.kind in ("vmem", "dma") and ps & c.uses:
                n = max(n, 5)
            if is_valu(c) and ps & c.uses:
                n = max(n, 4 if c.mn.startswith(("v_readlane", "v_writelane")) else 2)
            if c.kind == "salu" and ps & c.uses:
                n = max(n, 1)
        if c.mn.startswith(("v_readfirstlane", "v_readlane")) and pv & c.uses:
            n = max(n, 1)
        if is_valu(c) and ("dpp" in c.text or "row_" in c.text or "quad_perm" in c.text or c.mn.startswith("v_permlane")) and pv & c.uses:
            n = max(n, 2)
    if p.kind == "mfma":
        assert "16x16x32" in p.mn
        if c.kind == "mfma":
            if p.defs & c.srcab:
                n = max(n, 8)
            if p.defs & c.srcc and p.defs != c.srcc:
                n = max(n, 6)
            if p.defs & c.defs and not (p.defs & c.srcc):
                n = max(n, 8)
        elif p.defs & (c.uses | c.defs):
            n = max(n, 8)
        if p.srcc & c.defs and c.kind != "mfma":
            n = max(n, 3)
    if p.kind == "salu" and "m0" in p.defs and c.kind == "dma":
        n = max(n, 1)
    if p.sdata and p.sdata & c.defs:
        n = max(n, 2)
    return n


def insert_nops(lines):
    out = []
    nins = 0
    for ln in lines:
        c = Ins(ln)
        if c.kind not in ("label", "none"):
            dist, need = 0, 0
            for p in reversed(out):
                if dist >= 8:
                    break
                if p.kind in ("label", "none"):
                    continue
                k = need_states(p, c) - dist
                need = max(need, k)
                dist += p.states
            if need > 0:
                out.append(Ins(f"s_nop {need - 1}"))
                nins += 1
        out.append(c)
    return [i.text for i in out], nins


class Em:
    def __init__(self):
        self.L = []
        self.vm = 0
        self.vm_done = 0
        self.lg = 0
        self.lg_done = 0
        self.smem = False
        self.bg = []
        self.nlab = 0

    def __call__(self, s):
        mn = s.split(None, 1)[0] if s.strip() else ""
        assert not mn.startswith(("buffer_", "global_", "ds_", "s_load", "s_memtime", "s_memrealtime")), s
        self.L.append(s)

    def raw(self, s):
        self.L.append(s)

    def v(self, s):
        self.L.append(s)
        self.vm += 1
        return self.vm - 1

    def d(self, s):
        self.L.append(s)
        self.lg += 1
        return self.lg - 1

    def s(self, s):
        self.L.append(s)
        self.smem = True

    def wv(self, t=None):
        if t is None:
            t = self.vm - 1
        if t < self.vm_done:
            return
        n = min(63, self.vm - 1 - t)
        self.L.append(f"s_waitcnt vmcnt({n})")
        self.vm_done = max(self.vm_done, self.vm - n)

    def wl(self, t=None):
        if t is None:
            t = self.lg - 1
        if self.smem:
            self.L.append("s_waitcnt lgkmcnt(0)")
            self.smem = False
            self.lg_done = self.lg
            return
        if t < self.lg_done:
            return
        n = min(15, self.lg - 1 - t)
        self.L.append(f"s_waitcnt lgkmcnt({n})")
        self.lg_done = max(self.lg_done, self.lg - n)

    def state(self):
        return (self.vm, self.vm_done, self.lg, self.lg_done, self.smem)

    def restore(self, st):
        self.vm, self.vm_done, self.lg, self.lg_done, self.smem = st

    def join(self):
        self.vm += 1000
        self.vm_done = 0
        self.lg += 1000
        self.lg_done = 0
        self.smem = True
        return self.vm - 1

    def label(self, base="L"):
        self.nlab += 1
        return f"{base}_{self.nlab}"

    def tick(self, n=1):
        for _ in range(n):
            if self.bg:
                self.bg.pop(0)()

    def flush_bg(self):
        while self.bg:
            self.bg.pop(0)()


def V(b, n=1):
    return f"v{b}" if n == 1 else f"v[{b}:{b + n - 1}]"


def A(b, n=1):
    return f"a{b}" if n == 1 else f"a[{b}:{b + n - 1}]"


def S(b, n=1):
    return f"s{b}" if n == 1 else f"s[{b}:{b + n - 1}]"


def ins_sizes(body):
    import subprocess, tempfile, os
    d = tempfile.mkdtemp()
    src = os.path.join(d, "a.s")
    open(src, "w").write('.amdgcn_target "amdgcn-amd-amdhsa--gfx950"\n.text\n' + "\n".join(body) + "\n")
    subprocess.run(["clang", "-x", "assembler", "-target", "amdgcn-amd-amdhsa", "-mcpu=gfx950", "-c", src, "-o", src + ".o"], check=True)
    txt = subprocess.run(["llvm-objdump", "-d", "--mcpu=gfx950", src + ".o"], capture_output=True, text=True, check=True).stdout
    sizes = []
    for ln in txt.splitlines():
        m = re.search(r"// [0-9A-F]{12}: ((?:[0-9A-F]{8} ?)+)", ln)
        if m:
            sizes.append(4 * len(m.group(1).split()))
    return sizes


def align_pass(body, min_run=5):
    sizes = ins_sizes(body)
    idx = [i for i, l in enumerate(body) if Ins(l).kind not in ("label", "none")]
    assert len(idx) == len(sizes), (len(idx), len(sizes))
    sz = dict(zip(idx, sizes))
    out, osz = [], []
    addr = 0
    nw = npad = 0
    for i, l in enumerate(body):
        if i not in sz:
            out.append(l); osz.append(0)
            continue
        s = sz[i]
        if s == 8 and addr % 8 == 4:
            j = len(out) - 1
            done = False
            while j >= 0 and osz[j] in (0, 4):
                mn = out[j].split(None, 1)[0] if out[j].strip() else ""
                if osz[j] == 4 and mn.startswith("v_") and not mn.startswith(("v_readfirstlane", "v_nop")) and not mn.endswith("_e64"):
                    out[j] = out[j].replace(mn, mn.replace("_e32", "") + "_e64", 1)
                    osz[j] = 8
                    addr += 4
                    nw += 1
                    done = True
                    break
                j -= 1
            if not done:
                run = 0
                for k in range(i, len(body)):
                    if k in sz:
                        if sz[k] != 8:
                            break
                        if "v_mfma" in body[k]:
                            run = 0
                            break
                        run += 1
                if run >= min_run:
                    out.append("s_nop 0"); osz.append(4)
                    addr += 4
                    npad += 1
        out.append(l); osz.append(s)
        addr += s
    return out, nw, npad, addr
```

```python
import sys
from asmlib import *

KN = "gated_mix__ssm_conv_s4__dense_activation_relu__prompt_kernel"
OPT = dict(stamp=0, hflag_at=60, spin=20000, chk=14, align=1, dbgtime=0, hchk_at=170, kst=0, nw2=16, sleep=4, cper=4, gper=4, lsleep=12, btick=4)
for a in sys.argv[2:]:
    k, v = a.split("=")
    assert k in OPT, k
    OPT[k] = int(v)

WS_FUT = 0x1000
WS_FW2 = 0x4000
WS_FH = 0x8000
WS_FY = 0x20000
WS_G = 0x30000
WS_UT = 0x100000
WS_YT = 0x400000
WS_W2F = 0x700000
WS_HF = 0xA00000
WS_END = 0x10C0000
WS_STAMP = 0x2000000
WS_SIZE = 0x2100000 if OPT["stamp"] else WS_END

sW, sXCD, sSLOT, sXR, sXC, sRB, sCB, sTB, sDB, sST, sCS, sGATE, sYOK = 3, 4, 5, 6, 7, 8, 9, 10, 11, 12, 13, 14, 15
pU, pARE, pAIM, pBRE, pBIM, pCRE, pCIM, pLDT, pDSK, pW1, pW2, pGW, pOUT, pDBG, pWS = 16, 18, 20, 22, 24, 26, 28, 30, 32, 36, 38, 40, 42, 44, 46
rX, rW, rWS, rOUT, rST, sTAG, rW2 = 48, 52, 56, 60, 64, 68, 96
sXB, sWB, sLB = 70, 71, 72
sT = [73, 74, 75, 76, 77, 78, 79]
sCH, sLDT, sDSK, sP0F, sW2B, sU, sSPIN, sSSM, sC1, sC2, sFL = 80, 81, 82, 83, 84, 85, 86, 87, 90, 91, 100

vLANE, vI, vG, vSTAMP, vL16, vTMP, vTM2 = 1, 2, 3, 4, 5, 6, 7
vDX, vDW = 8, 12
vXA, vTA = 16, 20
vBAND = 28
vM = 48
vFL, vFA, vGG, vFT = 56, 58, 59, 60
RING = 32768
L_SSM = 98304
SSM_SZ = 12288
K_E, K_O, K_S2A, K_S2B, K_S3 = 8704, 8704 + 1216, 8704 + 2432, 8704 + 2432 + 256, 8704 + 2432 + 512
L_PART, L_AT, L_OS = 0, 61440, 74240
L_UNIT, L_SCR, L_GW = 135168, 151552, 160512

e = Em()
MF = "v_mfma_f32_16x16x32_bf16"
SC = "sc1"
tag_load = f"global_load_dwordx2 {V(vFL, 2)}, v{vFA}, {S(pDBG, 2)} sc1"
fl_load = f"buffer_load_dwordx2 {V(vFL, 2)}, v{vFA}, {S(rWS, 4)}, 0 offen sc1"


def setexec(mask):
    if mask == -1:
        e("s_mov_b64 exec, -1")
    else:
        e(f"s_mov_b32 exec_lo, {mask & 0xffffffff:#x}")
        e(f"s_mov_b32 exec_hi, {mask >> 32:#x}")


def stamp(k, rt=False, grp=1):
    if not OPT["stamp"] or (k >= 19 and OPT["kst"] != grp):
        return
    e.s(f"s_mem{'real' if rt else ''}time s[94:95]")
    e.wl()
    e(f"v_writelane_b32 v{vSTAMP}, s94, {k}")


def first_stamp():
    if OPT["stamp"]:
        e(f"v_writelane_b32 v{vSTAMP}, s92, 0")
        e(f"v_writelane_b32 v{vSTAMP}, s94, 1")
        stamp(2)


def spin_check(tk, sl="sleep"):
    lp, dn = e.label("Lsp"), e.label("Lsd")
    e.wv(tk)
    e(f"s_mov_b32 s{sSPIN}, 0")
    e(f"{lp}:")
    e(f"v_cmp_ne_u64 vcc, {S(sTAG, 2)}, {V(vFL, 2)}")
    e(f"s_cbranch_vccz {dn}")
    e(f"s_add_u32 s{sSPIN}, s{sSPIN}, 1")
    e(f"s_cmp_gt_u32 s{sSPIN}, {OPT['spin']}")
    e(f"s_cbranch_scc1 {dn}")
    e(f"s_sleep {OPT[sl]}")
    e.raw(fl_load)
    e.raw("s_waitcnt vmcnt(0)")
    e(f"s_branch {lp}")
    e(f"{dn}:")


def get_tag(tk):
    lp, dn = e.label("Ltg"), e.label("Ltd")
    e.wv(tk)
    e(f"s_mov_b32 s{sSPIN}, 0")
    e(f"{lp}:")
    e(f"v_readfirstlane_b32 s{sTAG}, v{vFL}")
    e(f"v_readfirstlane_b32 s{sTAG + 1}, v{vFL + 1}")
    e(f"s_cmp_lg_u32 s{sTAG + 1}, 0")
    e(f"s_cbranch_scc1 {dn}")
    e(f"s_add_u32 s{sSPIN}, s{sSPIN}, 1")
    e(f"s_cmp_gt_u32 s{sSPIN}, {OPT['spin']}")
    e(f"s_cbranch_scc1 {dn}")
    e(f"s_sleep {OPT['sleep']}")
    e.raw(tag_load)
    e.raw("s_waitcnt vmcnt(0)")
    e(f"s_branch {lp}")
    e(f"{dn}:")
    e("s_nop 1")


def store_flag(srd, soff, tmp):
    e(f"v_mov_b32 v{tmp}, s{sTAG}")
    e(f"v_mov_b32 v{tmp + 1}, s{sTAG + 1}")
    e("s_mov_b64 exec, 1")
    e.v(f"buffer_store_dwordx2 {V(tmp, 2)}, off, {S(srd, 4)}, s{soff} {SC}")
    e("s_mov_b64 exec, -1")


def tr_addr0(dst):
    e(f"v_lshrrev_b32 v{vTMP}, 2, v{vI}")
    e(f"v_and_b32 v{vTM2}, 1, v{vG}")
    e(f"v_lshl_or_b32 v{vTM2}, v{vTM2}, 2, v{vTMP}")
    e(f"v_lshl_add_u32 v{vTMP}, v{vG}, 3, v{vTMP}")
    e(f"v_lshlrev_b32 v{vTMP}, 8, v{vTMP}")
    e(f"v_lshl_add_u32 v{vTMP}, v{vTM2}, 5, v{vTMP}")
    e(f"v_and_b32 v{vTM2}, 3, v{vI}")
    e(f"v_lshl_add_u32 v{dst}, v{vTM2}, 3, v{vTMP}")


def wide_dma_addr(dst, pitch, d1=1):
    e(f"v_lshlrev_b32 v{vTMP}, 1, v{vG}")
    e(f"v_xor_b32 v{vTMP}, v{vTMP}, v{vI}")
    e(f"v_mul_u32_u24 v{vTM2}, {pitch}, v{vG}")
    e(f"v_lshl_add_u32 v{dst}, v{vTMP}, 4, v{vTM2}")
    e(f"v_xor_b32 v{vTMP}, 8, v{vTMP}")
    e(f"v_lshl_add_u32 v{dst + d1}, v{vTMP}, 4, v{vTM2}")


def dma(basesg, imm_src, lds_sg, imm_lds, vaddr, srd):
    if lds_sg is None:
        e(f"s_mov_b32 m0, {imm_lds}")
    else:
        e(f"s_add_u32 m0, s{lds_sg}, {imm_lds}")
    e(f"s_add_u32 s{sT[5]}, s{basesg}, {imm_src}")
    return e.v(f"buffer_load_dwordx4 v{vaddr}, {S(srd, 4)}, s{sT[5]} offen lds")


def w2_reg(n):
    return A(4 * n, 4) if n < 64 else V(252 - 4 * (n - 64), 4)


def w2_load(n):
    ksl, dtl = divmod(n, 5)
    e(f"s_add_u32 s{sT[4]}, s{sW2B}, {dtl * 55296 + ksl * 1024}")
    return e.v(f"buffer_load_dwordx4 {w2_reg(n)}, v{vL16}, {S(rWS, 4)}, s{sT[4]} offen sc1")


def set_srds():
    for r, p in ((rX, pU), (rW, pW1), (rWS, pWS), (rOUT, pOUT), (rST, pWS), (rW2, pW2)):
        e(f"s_mov_b64 {S(r, 2)}, {S(p, 2)}")


def p0_flag_addr(with_ut):
    e(f"s_mul_i32 s{sT[0]}, s{sW}, 13")
    e(f"s_lshr_b32 s{sT[0]}, s{sT[0]}, 1")
    e(f"v_bfe_u32 v{vTMP}, v{vLANE}, 1, 4")
    e(f"v_min_u32 v{vTMP}, 7, v{vTMP}")
    e(f"v_add_u32 v{vTMP}, s{sT[0]}, v{vTMP}")
    e(f"v_min_u32 v{vTMP}, 26, v{vTMP}")
    e(f"v_mul_u32_u24 v{vTMP}, 5, v{vTMP}")
    e(f"s_mul_i32 s{sT[0]}, s{sDB}, 5")
    e(f"v_and_b32 v{vTM2}, 1, v{vLANE}")
    e(f"v_lshlrev_b32 v{vTM2}, 2, v{vTM2}")
    e(f"v_add_u32 v{vTM2}, s{sT[0]}, v{vTM2}")
    e(f"v_lshrrev_b32 v{vTM2}, 3, v{vTM2}")
    e(f"v_add_u32 v{vTMP}, v{vTMP}, v{vTM2}")
    e(f"v_lshlrev_b32 v{vTMP}, 6, v{vTMP}")
    e(f"v_add_u32 v{vFA}, {WS_FW2}, v{vTMP}")
    if with_ut:
        e(f"s_lshr_b32 s{sT[0]}, s{sCH}, 6")
        e(f"s_lshl_b32 s{sT[0]}, s{sT[0]}, 10")
        e(f"s_add_u32 s{sT[0]}, s{sT[0]}, {WS_FUT}")
        e(f"v_lshlrev_b32 v{vTMP}, 6, v{vI}")
        e(f"v_add_u32 v{vTMP}, s{sT[0]}, v{vTMP}")
        e(f"v_cmp_lt_u32 vcc, 31, v{vLANE}")
        e(f"v_cndmask_b32 v{vFA}, v{vFA}, v{vTMP}, vcc")


def h_flag_addr():
    e(f"s_mul_i32 s{sT[0]}, s{sW}, 13")
    e(f"s_lshr_b32 s{sT[0]}, s{sT[0]}, 1")
    e(f"v_add_u32 v{vFA}, s{sT[0]}, v{vLANE}")
    e(f"v_cmp_gt_u32 vcc, 8, v{vLANE}")
    e(f"v_cndmask_b32 v{vFA}, 27, v{vFA}, vcc")
    e(f"v_lshlrev_b32 v{vFA}, 6, v{vFA}")
    e(f"s_lshl_b32 s{sT[0]}, s{sTB}, 11")
    e(f"s_add_u32 s{sT[0]}, s{sT[0]}, {WS_FH}")
    e(f"v_add_u32 v{vFA}, s{sT[0]}, v{vFA}")


def w2_unit_issue(vad, lds_sg, lds_imm):
    wide_dma_addr(vad, 1280)
    e(f"s_mul_i32 s{sT[0]}, s{sU}, 13108")
    e(f"s_lshr_b32 s{sT[0]}, s{sT[0]}, 16")
    e(f"s_mul_i32 s{sT[1]}, s{sT[0]}, 5")
    e(f"s_sub_u32 s{sT[1]}, s{sU}, s{sT[1]}")
    e(f"s_mul_i32 s{sC2}, s{sT[0]}, {64 * 1280}")
    e(f"s_lshl_b32 s{sT[2]}, s{sT[1]}, 8")
    e(f"s_add_u32 s{sC2}, s{sC2}, s{sT[2]}")
    e(f"s_mul_i32 s{sC1}, s{sT[1]}, {8 * 55296}")
    e(f"s_lshl_b32 s{sT[2]}, s{sT[0]}, 11")
    e(f"s_add_u32 s{sC1}, s{sC1}, s{sT[2]}")
    e(f"s_add_u32 s{sC1}, s{sC1}, {WS_W2F}")
    e(f"s_lshl_b32 s{sP0F}, s{sU}, 6")
    e(f"s_add_u32 s{sP0F}, s{sP0F}, {WS_FW2}")
    for m in range(16):
        row = 32 * (m >> 3) + 16 * (m & 1) + 4 * ((m >> 1) & 3)
        t = dma(sC2, row * 1280, lds_sg, lds_imm + m * 1024, vad + ((m >> 1) & 1), rW2)
    return t


def w2_unit_finish(tk, vbase, F):
    if tk is not None:
        e.wv(tk)
    tks = {}
    for ft in range(8):
        e(f"v_xor_b32 v{vTMP}, {ft << 5}, v{vbase}")
        for kk in range(2):
            for hh in range(2):
                tks[ft, kk] = e.d(f"ds_read_b64_tr_b16 {V(F + 8 * ft + 4 * kk + 2 * hh, 2)}, v{vTMP} offset:{kk * 8192 + hh * 1024}")
        e.tick(2)
    for ft in range(8):
        e(f"s_add_u32 s{sT[3]}, s{sC1}, {ft * 55296}")
        for kk in range(2):
            e.wl(tks[ft, kk])
            t = e.v(f"buffer_store_dwordx4 {V(F + 8 * ft + 4 * kk, 4)}, v{vL16}, {S(rWS, 4)}, s{sT[3]} offen offset:{1024 * kk} {SC}")
        e.tick(2)
    return t


e(f"{KN}:")
e("s_cmp_ge_u32 s2, 256")
e("s_cbranch_scc1 Lend")
e.s("s_load_dwordx16 s[16:31], s[0:1], 0")
e.s("s_load_dwordx16 s[32:47], s[0:1], 64")
if OPT["stamp"]:
    e.raw("s_memtime s[92:93]")
if OPT["stamp"] or OPT["dbgtime"]:
    e.raw("s_memrealtime s[94:95]")
e("s_getpc_b64 s[88:89]")
e("Lpc:")
e(f"v_lshrrev_b32 v{vTMP}, 6, v0")
e(f"v_and_b32 v{vLANE}, 63, v0")
e(f"v_readfirstlane_b32 s{sW}, v{vTMP}")
e(f"v_and_b32 v{vI}, 15, v0")
e(f"v_bfe_u32 v{vG}, v0, 4, 2")
e(f"v_lshlrev_b32 v{vL16}, 4, v{vLANE}")
e(f"s_and_b32 s{sXCD}, s2, 7")
e(f"s_lshr_b32 s{sSLOT}, s2, 3")
e(f"s_lshl2_add_u32 s{sT[0]}, s{sSLOT}, s{sW}")
e(f"s_lshl_b32 s{sT[0]}, s{sT[0]}, 9")
e(f"v_and_b32 v{vTMP}, 3, v0")
e(f"v_lshlrev_b32 v{vTMP}, 7, v{vTMP}")
e(f"v_add_u32 v{vTMP}, s{sT[0]}, v{vTMP}")
e(f"v_min_u32 v{vTMP}, Lend-Lpc, v{vTMP}")
e.v(f"global_load_dword v62, v{vTMP}, s[88:89]")
e(f"s_lshr_b32 s{sXR}, s{sXCD}, 1")
e(f"s_and_b32 s{sXC}, s{sXCD}, 1")
e(f"s_lshr_b32 s{sT[0]}, s{sSLOT}, 2")
e(f"s_lshl3_add_u32 s{sTB}, s{sXR}, s{sT[0]}")
e(f"s_and_b32 s{sT[0]}, s{sSLOT}, 3")
e(f"s_lshl2_add_u32 s{sDB}, s{sXC}, s{sT[0]}")
e(f"s_lshl_b32 s{sLB}, s{sW}, 12")
e(f"s_mul_i32 s{sW2B}, s{sDB}, {5 * 55296}")
e(f"s_mul_i32 s{sT[0]}, s{sW}, {13 * 1024}")
e(f"s_add_u32 s{sW2B}, s{sW2B}, s{sT[0]}")
e(f"s_add_u32 s{sW2B}, s{sW2B}, {WS_W2F}")
for r, sz in ((rX, 2621440), (rW, 2211840), (rWS, WS_SIZE), (rOUT, 2621440), (rST, 0), (rW2, 2211840)):
    e(f"s_mov_b32 s{r + 2}, {sz}")
    e(f"s_mov_b32 s{r + 3}, 0x20000")
e(f"s_mov_b32 s{sP0F}, 0")
e(f"s_cmp_lt_u32 s{sSLOT}, 4")
e("s_cbranch_scc1 Lfree")
st_entry = e.state()
e(f"s_sub_u32 s{sSLOT}, s{sSLOT}, 4")

e(f"s_and_b32 s{sT[0]}, s{sSLOT}, 3")
e(f"s_lshl2_add_u32 s{sRB}, s{sXR}, s{sT[0]}")
e(f"s_lshr_b32 s{sT[1]}, s{sSLOT}, 2")
e(f"s_mul_i32 s{sCB}, s{sXC}, 7")
e(f"s_add_u32 s{sCB}, s{sCB}, s{sT[1]}")
e(f"s_mul_i32 s{sT[0]}, s{sT[0]}, 5")
e(f"s_lshr_b32 s{sT[0]}, s{sT[0]}, 1")
e(f"s_mul_i32 s{sT[1]}, s{sCB}, 3")
e(f"s_add_u32 s{sST}, s{sT[0]}, s{sT[1]}")
e(f"s_mul_i32 s{sT[0]}, s{sST}, 6554")
e(f"s_lshr_b32 s{sT[0]}, s{sT[0]}, 16")
e(f"s_mul_i32 s{sT[0]}, s{sT[0]}, 10")
e(f"s_sub_u32 s{sST}, s{sST}, s{sT[0]}")
e(f"s_mov_b32 s{sCS}, s{sST}")
e(f"s_mul_i32 s{sCH}, s{sXCD}, 28")
e(f"s_add_u32 s{sCH}, s{sCH}, s{sSLOT}")
e(f"s_mul_i32 s{sCH}, s{sCH}, 3")
e(f"s_add_u32 s{sCH}, s{sCH}, s{sW}")
e(f"s_cmp_lt_u32 s{sCH}, 640")
e(f"s_cselect_b32 s{sYOK}, {WS_SIZE}, 0")
e(f"s_min_u32 s{sCH}, s{sCH}, 639")
e(f"s_mul_i32 s{sSSM}, s{sW}, {SSM_SZ}")
e(f"s_add_u32 s{sSSM}, s{sSSM}, {L_SSM}")
e(f"s_lshl_b32 s{sT[0]}, s{sCH}, 8")
e(f"v_lshl_add_u32 v63, v{vLANE}, 2, s{sT[0]}")
e(f"v_lshrrev_b32 v{vTMP}, 3, v{vLANE}")
e(f"v_mul_u32_u24 v{vTM2}, 1280, v{vTMP}")
e(f"v_and_b32 v{vTMP}, 7, v{vLANE}")
e(f"v_xor_b32 v{vTMP}, v{vTMP}, v{vG}")
e(f"v_lshl_add_u32 v{vDX}, v{vTMP}, 4, v{vTM2}")
e(f"v_xor_b32 v{vDX + 1}, 64, v{vDX}")
e(f"v_add_u32 v{vDX + 2}, {2 * 9216}, v{vDX}")
e(f"v_add_u32 v{vDX + 3}, {3 * 9216}, v{vDX + 1}")
e(f"v_add_u32 v{vDX + 1}, 9216, v{vDX + 1}")
wide_dma_addr(vDW, 3456, 2)
e(f"s_cmp_eq_u32 s{sCB}, 13")
e(f"s_cselect_b32 s{sT[0]}, 8, 0")
e(f"v_and_b32 v{vTMP}, s{sT[0]}, v{vI}")
e(f"v_lshl_add_u32 v{vDW}, v{vTMP}, 27, v{vDW}")
e(f"v_xor_b32 v{vTMP}, s{sT[0]}, v{vTMP}")
e(f"v_lshl_add_u32 v{vDW + 2}, v{vTMP}, 27, v{vDW + 2}")
e(f"v_add_u32 v{vDW + 1}, 12800, v{vDW}")
e(f"v_add_u32 v{vDW + 3}, {3 * 12800}, v{vDW + 2}")
e(f"v_add_u32 v{vDW + 2}, {2 * 12800}, v{vDW + 2}")
e(f"s_lshr_b32 s{sT[0]}, s{sW}, 1")
e(f"s_lshl1_add_u32 s{sGATE}, s{sCB}, s{sT[0]}")


def stage_bases():
    e(f"s_lshl2_add_u32 s{sXB}, s{sRB}, s{sW}")
    e(f"s_mul_i32 s{sXB}, s{sXB}, {32 * 1280}")
    e(f"s_lshl_b32 s{sT[0]}, s{sST}, 7")
    e(f"s_add_u32 s{sXB}, s{sXB}, s{sT[0]}")
    e(f"s_lshl2_add_u32 s{sWB}, s{sST}, s{sW}")
    e(f"s_mul_i32 s{sWB}, s{sWB}, {16 * 3456}")
    e(f"s_lshl_b32 s{sT[0]}, s{sCB}, 8")
    e(f"s_add_u32 s{sWB}, s{sWB}, s{sT[0]}")


def adv(s):
    e(f"s_add_u32 s{s}, s{s}, 1")
    e(f"s_cmp_eq_u32 s{s}, 10")
    e(f"s_cselect_b32 s{s}, 0, s{s}")


def next_stage_ops():
    def a():
        e(f"s_add_u32 s{sST}, s{sST}, 1")
        e(f"s_cmp_eq_u32 s{sST}, 10")
        e(f"s_cselect_b32 s{sT[5]}, 9, -1")

    def b():
        e(f"s_mul_i32 s{sT[6]}, s{sT[5]}, 128")
        e(f"s_sub_u32 s{sXB}, s{sXB}, s{sT[6]}")

    def c():
        e(f"s_mul_i32 s{sT[6]}, s{sT[5]}, {64 * 3456}")
        e(f"s_sub_u32 s{sWB}, s{sWB}, s{sT[6]}")

    def d():
        e(f"s_cmp_eq_u32 s{sST}, 10")
        e(f"s_cselect_b32 s{sST}, 0, s{sST}")
    return [a, b, c, d]


def stage_dma_ops(buf, w=None, parts="xw", setm0=True):
    ops = []
    for part, base, va, srd, lo, dw in (("x", sXB, vDX, rX, 0, 32 * 1280), ("w", sWB, vDW, rW, 16384, 16 * 3456)):
        if part not in parts:
            continue
        for j in range(4):
            def op(j=j, base=base, va=va, srd=srd, lo=lo, dw=dw):
                so = base
                if w is None:
                    if j == 0 and setm0:
                        e(f"s_add_u32 m0, s{sLB}, {buf + lo}")
                else:
                    so = sT[2]
                    if j == 0:
                        e(f"s_mov_b32 m0, {buf + lo + w * 4096}")
                        e(f"s_sub_u32 s{so}, s{base}, {(3 - w) * dw}")
                return e.v(f"buffer_load_dwordx4 v{va + j}, {S(srd, 4)}, s{so} offen offset:{1024 * j} lds")
            ops.append(op)
    return ops


def g1_frag_addrs():
    e(f"s_and_b32 s{sT[0]}, s{sW}, 1")
    e(f"s_lshl_b32 s{sT[0]}, s{sT[0]}, 13")
    e(f"v_lshrrev_b32 v{vTMP}, 1, v{vI}")
    e(f"v_xor_b32 v{vTMP}, v{vTMP}, v{vG}")
    e(f"v_lshlrev_b32 v{vTM2}, 7, v{vI}")
    e(f"v_add_u32 v{vTM2}, s{sT[0]}, v{vTM2}")
    e(f"v_lshl_add_u32 v{vXA}, v{vTMP}, 4, v{vTM2}")
    e(f"v_xor_b32 v{vXA + 1}, 64, v{vXA}")
    e(f"v_add_u32 v{vXA + 2}, 0x10000, v{vXA}")
    e(f"v_add_u32 v{vXA + 3}, 0x10000, v{vXA + 1}")
    tr_addr0(vTA)
    e(f"s_lshr_b32 s{sT[1]}, s{sW}, 1")
    e(f"s_lshl_b32 s{sT[1]}, s{sT[1]}, 7")
    e(f"v_xor_b32 v{vTA}, s{sT[1]}, v{vTA}")
    for i in range(1, 4):
        e(f"v_xor_b32 v{vTA + i}, {i << 5}, v{vTA}")
    for i in range(4):
        e(f"v_add_u32 v{vTA + 4 + i}, 0x10000, v{vTA + i}")


GWR = 240


def gate_issue():
    lab = e.label("Lng")
    e(f"s_cmp_lg_u32 s{sGATE}, 27")
    e(f"s_cbranch_scc1 {lab}")
    e.raw(f"global_load_dwordx4 {V(GWR, 4)}, v{vL16}, {S(pGW, 2)}")
    e(f"v_add_u32 v{GWR + 8}, 1024, v{vL16}")
    e(f"v_min_u32 v{GWR + 8}, 0x4f0, v{GWR + 8}")
    e.raw(f"global_load_dwordx4 {V(GWR + 4, 4)}, v{GWR + 8}, {S(pGW, 2)}")
    e(f"{lab}:")


def gate_store():
    lab = e.label("Lng")
    e(f"s_cmp_lg_u32 s{sGATE}, 27")
    e(f"s_cbranch_scc1 {lab}")
    e(f"v_add_u32 v{vTMP}, {L_GW}, v{vL16}")
    e(f"v_add_u32 v{GWR + 8}, {L_GW}, v{GWR + 8}")
    e.raw(f"ds_write_b128 v{vTMP}, {V(GWR, 4)}")
    e.raw(f"ds_write_b128 v{GWR + 8}, {V(GWR + 4, 4)}")
    e(f"{lab}:")


stage_bases()
e(f"s_cmp_eq_u32 s{sW}, 3")
e("s_cbranch_scc1 Lbeta")
st_ab = e.state()

e.wl()
first_stamp()
gate_issue()
PR = 250
tP = [e.v(f"global_load_dword v{PR + i}, v63, {S(p, 2)}") for i, p in enumerate((pARE, pAIM, pBRE, pBIM, pCRE, pCIM))]
e("s_barrier")
e(f"s_and_b32 s{sT[0]}, s{sCH}, 0xfffe")
e(f"s_lshl_b32 s{sT[0]}, s{sT[0]}, 1")
e.s(f"s_load_dword s{sLDT}, {S(pLDT, 2)}, s{sT[0]}")
e.s(f"s_load_dword s{sDSK}, {S(pDSK, 2)}, s{sT[0]}")
set_srds()
g1_frag_addrs()
e("v_mov_b32 v64, 0"); e("v_mov_b32 v65, 0"); e("v_mov_b32 v66, 0"); e("v_mov_b32 v67, 0")
vSTW, vSTR, vST8 = vM, vM + 1, vM + 2
e(f"v_add_u32 v{vSTW}, s{sSSM}, v{vL16}")
for i in range(3):
    e.d(f"ds_write_b128 v{vSTW}, v[64:67] offset:{K_E + i * 1024}")
e(f"v_lshlrev_b32 v{vTMP}, 3, v{vLANE}")
e(f"v_add_u32 v{vST8}, s{sSSM}, v{vTMP}")
e.d(f"ds_write_b64 v{vST8}, v[64:65] offset:{K_E + 3072}")
e(f"v_lshrrev_b32 v{vTMP}, 1, v{vI}")
e(f"v_mul_u32_u24 v{vTMP}, 1040, v{vTMP}")
e(f"v_lshl_add_u32 v{vTMP}, v{vG}, 5, v{vTMP}")
e(f"v_and_b32 v{vTM2}, 1, v{vI}")
e(f"v_lshl_add_u32 v{vTMP}, v{vTM2}, 3, v{vTMP}")
e(f"v_add_u32 v{vSTR}, s{sSSM}, v{vTMP}")
e(f"s_mov_b32 s{sC1}, 0x3f800000")
e(f"s_mov_b32 s{sC2}, 0xffff0000")
e(f"v_lshlrev_b32 v68, 3, v{vG}")
for bi, (lo, wd) in enumerate(((11, 3), (6, 5), (5, 7), (4, 9), (12, 2))):
    e(f"v_add_u32 v{vTMP}, {lo}, v{vI}")
    e(f"v_bfm_b32 v{vTMP}, {wd}, v{vTMP}")
    e(f"v_lshrrev_b32 v{vTMP}, v68, v{vTMP}")
    for jj in range(4):
        e(f"v_bfe_i32 v69, v{vTMP}, {2 * jj}, 1")
        e(f"v_bfe_i32 v70, v{vTMP}, {2 * jj + 1}, 1")
        e(f"v_and_b32 v69, {'0x3f80' if bi < 4 else '0xffff'}, v69")
        e(f"v_and_or_b32 v{vBAND + 4 * bi + jj}, v70, s{sC1 if bi < 4 else sC2}, v69")
vA0, vA1, vA2, vA3, vA4 = vM + 3, vM + 4, vM + 5, vM + 6, vM + 7
e(f"v_lshrrev_b32 v{vTMP}, 1, v{vG}")
e(f"v_lshlrev_b32 v{vTMP}, 8, v{vTMP}")
e(f"v_lshl_add_u32 v{vTMP}, v{vI}, 4, v{vTMP}")
e(f"v_and_b32 v{vTM2}, 1, v{vG}")
e(f"v_lshl_add_u32 v{vTMP}, v{vTM2}, 3, v{vTMP}")
e(f"v_sub_u32 v{vA0}, s{sSSM}, v{vTMP}")
e(f"v_lshlrev_b32 v{vTMP}, 8, v{vG}")
e(f"v_lshl_add_u32 v{vTMP}, v{vI}, 4, v{vTMP}")
e(f"v_sub_u32 v{vA1}, s{sSSM}, v{vTMP}")
e(f"v_lshrrev_b32 v{vTMP}, 1, v{vI}")
e(f"v_lshl_add_u32 v{vTMP}, v{vG}, 4, v{vTMP}")
e(f"v_lshlrev_b32 v{vTMP}, 2, v{vTMP}")
e(f"v_and_b32 v{vTM2}, 1, v{vI}")
e(f"v_lshlrev_b32 v{vTM2}, 8, v{vTM2}")
e(f"v_sub_u32 v{vTMP}, v{vTM2}, v{vTMP}")
e(f"v_add_u32 v{vA2}, s{sSSM}, v{vTMP}")
e(f"v_lshrrev_b32 v{vTMP}, 1, v{vI}")
e(f"v_lshl_add_u32 v{vTMP}, v{vG}, 5, v{vTMP}")
e(f"v_lshlrev_b32 v{vTMP}, 2, v{vTMP}")
e(f"v_and_b32 v{vTM2}, 1, v{vI}")
e(f"v_lshlrev_b32 v{vTM2}, 1, v{vTM2}")
e(f"v_sub_u32 v{vTMP}, v{vTM2}, v{vTMP}")
e(f"v_add_u32 v{vA3}, s{sSSM}, v{vTMP}")
e(f"v_mov_b32 v{vA4}, s{sSSM}")
for op in stage_dma_ops(0, parts="w"):
    op()
for op in next_stage_ops():
    op()
stamp(19)
e.wl()
for sx in (sLDT, sDSK):
    e(f"s_lshl_b32 s{sT[0]}, s{sx}, 16")
    e(f"s_and_b32 s{sT[1]}, s{sx}, 0xffff0000")
    e(f"s_bitcmp1_b32 s{sCH}, 0")
    e(f"s_cselect_b32 s{sx}, s{sT[1]}, s{sT[0]}")
vDT = 64
e(f"v_mov_b32 v66, s{sLDT}")
e("v_mul_f32 v67, 0x3fb8aa3b, v66")
e("v_fmac_f32 v67, 0x32a5705f, v66")
e("v_exp_f32 v67, v67")
e("v_cvt_pk_bf16_f32 v67, v67, v67")
e(f"v_lshlrev_b32 v{vDT}, 16, v67")
e(f"v_mov_b32 v{vDT + 1}, v{vDT}")

pool = list(range(76, 240, 2))


def alloc():
    return pool.pop(0)


def free(*rs):
    pool.extend(rs)


def cmul(z, q, conj=False):
    d = alloc()
    return d, [f"v_pk_mul_f32 {V(d, 2)}, {V(z, 2)}, {V(q, 2)} op_sel:[0,0] op_sel_hi:[1,0]",
               f"v_pk_fma_f32 {V(d, 2)}, {V(z, 2)}, {V(q, 2)}, {V(d, 2)} op_sel:[1,1,0] op_sel_hi:[0,1,1] {'neg_hi' if conj else 'neg_lo'}:[1,0,0]"]


def cmul2(z, q, conj=False):
    d0, c0 = cmul(z[0], q[0], conj)
    d1, c1 = cmul(z[1], q[1], conj)
    for x in (c0[0], c1[0], c0[1], c1[1]):
        e(x)
    return (d0, d1)


cvt_i = [0]


def put_row(z, row):
    c = (68, 72)[(cvt_i[0] // 2) % 2] + 2 * (row & 1)
    assert cvt_i[0] % 2 == row % 2
    cvt_i[0] += 1
    if z is None:
        e(f"v_mov_b32 v{c}, 0x3f80")
        e(f"v_mov_b32 v{c + 1}, 0x3f80")
    else:
        e(f"v_cvt_pk_bf16_f32 v{c}, v{z[0]}, v{z[0] + 1}")
        e(f"v_cvt_pk_bf16_f32 v{c + 1}, v{z[1]}, v{z[1] + 1}")
    if row & 1:
        e.d(f"ds_write_b128 v{vSTW}, {V(c - 2, 4)} offset:{(row >> 1) * 1040}")


def read_tile(tile):
    return [e.d(f"ds_read2_b64 {A(32 * tile + 4 * k, 4)}, v{vSTR} offset0:{16 * k} offset1:{16 * k + 2}") for k in range(8)]


e.wv(tP[-1])
stamp(3)
gate_store()
AW, Bc, Cc = [], [], []
for s in range(2):
    aw, b, c = alloc(), alloc(), alloc()
    for dst, src in ((aw, PR), (aw + 1, PR + 1), (b, PR + 2), (b + 1, PR + 3), (c, PR + 4), (c + 1, PR + 5)):
        e(f"v_lshlrev_b32 v{dst}, 16, v{src}" if s == 0 else f"v_and_b32 v{dst}, 0xffff0000, v{src}")
    e(f"v_pk_mul_f32 {V(aw, 2)}, {V(aw, 2)}, {V(vDT, 2)}")
    e(f"v_mul_f32 v{aw}, 0x3fb8aa3b, v{aw}")
    e(f"v_mul_f32 v{aw + 1}, 0.15915494, v{aw + 1}")
    AW.append(aw); Bc.append(b); Cc.append(c)


def direct(m):
    out, tmp = [], []
    for s in range(2):
        d, t = alloc(), alloc()
        if m == 1:
            e(f"v_exp_f32 v{t}, v{AW[s]}")
            e(f"v_fract_f32 v{t + 1}, v{AW[s] + 1}")
        else:
            lit = {8: "0x41000000", 128: "0x43000000"}[m]
            e(f"v_mul_f32 v{t}, {lit}, v{AW[s]}")
            e(f"v_mul_f32 v{t + 1}, {lit}, v{AW[s] + 1}")
            e(f"v_exp_f32 v{t}, v{t}")
            e(f"v_fract_f32 v{t + 1}, v{t + 1}")
        out.append(d); tmp.append(t)
    for s in range(2):
        e(f"v_cos_f32 v{out[s]}, v{tmp[s] + 1}")
        e(f"v_sin_f32 v{out[s] + 1}, v{tmp[s] + 1}")
    for s in range(2):
        e(f"v_pk_mul_f32 {V(out[s], 2)}, {V(out[s], 2)}, {V(tmp[s], 2)} op_sel:[0,0] op_sel_hi:[1,0]")
        free(tmp[s])
    return tuple(out)


q8 = direct(8)
X = cmul2(Cc, Bc)
for s in range(2):
    e(f"v_pk_mul_f32 {V(X[s], 2)}, {V(X[s], 2)}, {V(vDT, 2)} neg_hi:[0,1]")
free(*Bc); free(*Cc)
E = {}
E[1] = direct(1)
q128 = direct(128)
stamp(20)
for rho in range(16):
    if rho < 15:
        Xn = cmul2(X, q8, conj=True)
    put_row(X, rho)
    free(*X)
    X = Xn
tX = read_tile(0)
stamp(21)
E[8] = q8
for l in range(1, 9):
    if l < 7:
        E[l + 1] = cmul2(E[l], E[1])
    put_row(E[l], l - 1)
for b in range(8):
    E[129 + b] = cmul2(E[1 + b], q128)
    put_row(E[129 + b], 8 + b)
    if b % 2 == 0:
        free(*E[129 + b])
for l in (1, 3, 5, 7):
    free(*E[l])
tY0 = read_tile(1)
stamp(22)
q256 = cmul2(q128, q128)
q512 = cmul2(q256, q256)
q1024 = cmul2(q512, q512)
for c in range(2):
    for b in range(4):
        l = 258 + 128 * c + 2 * b
        E[l] = cmul2(E[l - 256], q256)
        put_row(E[l], 4 * c + b)
        if b % 2 == 0:
            free(*E[l])
for c in range(4):
    for b in range(2):
        l = 516 + 128 * c + 4 * b
        E[l] = cmul2(E[l - 512], q512)
        put_row(E[l], 8 + 2 * c + b)
        if b == 0:
            free(*E[l])
tY1 = read_tile(2)
stamp(23)
for c in range(8):
    l = 1032 + 128 * c
    z = cmul2(E[l - 1024], q1024)
    put_row(z, c)
    free(*z)
put_row(None, 8)
put_row(None, 9)
tY2 = read_tile(3)
stamp(24)
D0, D1, D2 = 80, 84, 88
e.wl(tY1[-1])
for k in range(8):
    for t, D in ((1, D0), (2, D1)):
        e(f"{MF} {V(D, 4)}, {A(32 * t + 4 * k, 4)}, {A(4 * k, 4)}, {'0' if k == 0 else V(D, 4)}")
e.wl(tY2[-1])
e("v_mov_b32 v66, 0"); e("v_mov_b32 v67, 0")
e.d(f"ds_write_b64 v{vST8}, v[66:67]")
exp_ops = []
X_ = exp_ops.append
X_(lambda: e(f"v_cvt_pk_bf16_f32 v92, v{D0 + 3}, v{D0 + 2}"))
X_(lambda: e(f"v_cvt_pk_bf16_f32 v93, v{D0 + 1}, v{D0}"))
X_(lambda: e(f"v_cvt_pk_bf16_f32 v94, v{D0 + 2}, v{D0 + 1}"))
X_(lambda: e.d(f"ds_write_b64 v{vA0}, v[92:93] offset:{K_E + 2 * (544 - 4)}"))
X_(lambda: e.d(f"ds_write_b32 v{vA0}, v94 offset:{K_O + 2 * (545 - 3)}"))
X_(lambda: e.d(f"ds_write_b16_d16_hi v{vA0}, v93 offset:{K_O + 2 * (545 - 1)}"))
X_(lambda: e.d(f"ds_write_b16 v{vA0}, v92 offset:{K_O + 2 * (545 - 4)}"))
for k in range(8):
    e(f"{MF} {V(D2, 4)}, {A(96 + 4 * k, 4)}, {A(4 * k, 4)}, {'0' if k == 0 else V(D2, 4)}")
    if k >= 4:
        exp_ops.pop(0)()
for op in exp_ops:
    op()
stamp(25)
e(f"v_cvt_pk_bf16_f32 v96, v{D1 + 3}, v{D1 + 3}")
e(f"v_cvt_pk_bf16_f32 v97, v{D1 + 3}, v{D1 + 2}")
e(f"v_cvt_pk_bf16_f32 v98, v{D1 + 1}, v{D1 + 1}")
e(f"v_cvt_pk_bf16_f32 v99, v{D1 + 1}, v{D1}")
e(f"v_cvt_pk_bf16_f32 v100, v{D1 + 2}, v{D1 + 1}")
e(f"v_cvt_pk_bf16_f32 v101, v{D1}, v{D1 + 1}")
e(f"v_cvt_pk_bf16_f32 v102, v{D1 + 2}, v{D1 + 3}")
e(f"v_readlane_b32 s{sT[0]}, v96, 63")
e(f"v_cvt_pk_bf16_f32 v104, v{D2}, v{D2 + 1}")
e(f"v_cvt_pk_bf16_f32 v105, v{D2 + 2}, v{D2 + 3}")
e(f"v_add_f32 v106, s{sDSK}, v{D2}")
e("v_cvt_pk_bf16_f32 v106, v106, v106")
for jj in range(4):
    e(f"v_and_b32 v{vBAND + 16 + jj}, s{sT[0]}, v{vBAND + 16 + jj}")
setexec(0xffffffff)
e.d(f"ds_write_b128 v{vA1}, v[96:99] offset:{K_O + 2 * (545 - 265)}")
e.d(f"ds_write_b16_d16_hi v{vA1}, v99 offset:{K_E + 2 * (544 - 258)}")
e.d(f"ds_write_b32 v{vA1}, v98 offset:{K_E + 2 * (544 - 260)}")
e.d(f"ds_write_b32 v{vA1}, v100 offset:{K_E + 2 * (544 - 262)}")
e.d(f"ds_write_b32 v{vA1}, v96 offset:{K_E + 2 * (544 - 264)}")
e.d(f"ds_write_b16 v{vA1}, v96 offset:{K_E + 2 * (544 - 265)}")
e.d(f"ds_write_b16 v{vA3}, v104 offset:{K_S3 + 4 * (127 - 64)}")
e.d(f"ds_write_b16_d16_hi v{vA3}, v104 offset:{K_S3 + 4 * (127 - 72)}")
e.d(f"ds_write_b16 v{vA3}, v105 offset:{K_S3 + 4 * (127 - 80)}")
e.d(f"ds_write_b16_d16_hi v{vA3}, v105 offset:{K_S3 + 4 * (127 - 88)}")
setexec(0x80000000)
e.d(f"ds_write_b16 v{vA4}, v96 offset:{K_E + 2 * (544 - 514)}")
e.d(f"ds_write_b16 v{vA4}, v96 offset:{K_O + 2 * (545 - 514)}")
setexec(0xffffffff00000000)
e.d(f"ds_write_b32 v{vA2}, v101 offset:{K_S2A + 4 * 79}")
e.d(f"ds_write_b32 v{vA2}, v102 offset:{K_S2A + 4 * (79 - 8)}")
setexec(0x8000000000000000)
e.d(f"ds_write_b16 v{vA4}, v92 offset:{K_E + 2 * (544 - 257)}")
e.d(f"ds_write_b16 v{vA4}, v92 offset:{K_O + 2 * (545 - 257)}")
setexec(0x100000000)
e.d(f"ds_write_b16 v{vA4}, v106 offset:{K_E + 2 * 544}")
e.d(f"ds_write_b16 v{vA4}, v106 offset:{K_O + 2 * 545}")
setexec(-1)
stamp(4)
e.wv()
e("s_branch Lg1")

e.restore(st_ab)
e("Lbeta:")
e.wl()
first_stamp()
set_srds()
gate_issue()
e("s_barrier")
e(f"s_cmp_lt_u32 s{sCB}, 10")
e("s_cbranch_scc1 Lb_nou")
sv = e.state()
e(f"s_sub_u32 s{sU}, s{sCB}, 10")
e(f"s_lshl4_add_u32 s{sU}, s{sU}, s{sRB}")
w2_unit_issue(vM, None, L_UNIT)
e.restore(sv)
e("Lb_nou:")
for w in range(4):
    for op in stage_dma_ops(0, w, "x"):
        tX0 = op()
for op in stage_dma_ops(0, 3, "w"):
    tW0 = op()
g1_frag_addrs()
st_b = e.state()


def queue_stage1():
    e.bg.extend(next_stage_ops())
    for w in range(4):
        e.bg.extend(stage_dma_ops(RING, w))


e(f"s_mov_b32 s{rST + 2}, {WS_SIZE}")
e(f"s_cmp_lt_u32 s{sCB}, 10")
e("s_cbranch_scc1 Lb_ut")
tr_addr0(vM + 2)
e(f"v_add_u32 v{vM + 2}, {L_UNIT}, v{vM + 2}")
e.raw("s_waitcnt vmcnt(20)")
stamp(3)
gate_store()
queue_stage1()
w2_unit_finish(None, vM + 2, 64)
e.flush_bg()
e.wv(tW0)
e("s_branch Lb_done")
e.restore(st_b)
e("Lb_ut:")
queue_stage1()
e.tick(OPT["btick"])
vU0, vSW, vSR, vUS = vM, vM + 4, vM + 5, vM + 6
e(f"v_lshrrev_b32 v{vTMP}, 2, v{vI}")
e(f"v_lshl_add_u32 v{vTM2}, v{vG}, 3, v{vTMP}")
e(f"v_lshlrev_b32 v{vU0}, 7, v{vTM2}")
e(f"v_lshrrev_b32 v{vTMP}, 3, v{vI}")
e(f"v_bfe_u32 v{vTM2}, v{vI}, 1, 1")
e(f"v_xor_b32 v{vTMP}, v{vTMP}, v{vTM2}")
e(f"v_and_b32 v{vTM2}, 1, v{vG}")
e(f"v_lshl_or_b32 v{vTMP}, v{vTM2}, 2, v{vTMP}")
e(f"v_lshl_add_u32 v{vU0}, v{vTMP}, 4, v{vU0}")
e(f"v_and_b32 v{vTM2}, 1, v{vI}")
e(f"v_lshl_add_u32 v{vU0}, v{vTM2}, 3, v{vU0}")
for k in range(1, 4):
    e(f"v_xor_b32 v{vU0 + k}, {k << 5}, v{vU0}")
e(f"v_mul_u32_u24 v{vTMP}, 272, v{vI}")
e(f"v_lshl_add_u32 v{vTMP}, v{vG}, 4, v{vTMP}")
e(f"v_add_u32 v{vSW}, {L_SCR}, v{vTMP}")
e(f"v_mul_u32_u24 v{vTMP}, 272, v{vG}")
e(f"v_lshl_add_u32 v{vTMP}, v{vI}, 4, v{vTMP}")
e(f"v_add_u32 v{vSR}, {L_SCR}, v{vTMP}")
e(f"v_lshlrev_b32 v{vTMP}, 4, v{vI}")
e(f"v_lshl_add_u32 v{vUS}, v{vG}, 12, v{vTMP}")
e(f"s_lshl_b32 s{sC1}, s{sCS}, 18")
e(f"s_lshl_b32 s{sT[0]}, s{sRB}, 8")
e(f"s_add_u32 s{sC1}, s{sC1}, s{sT[0]}")
e(f"s_add_u32 s{sC1}, s{sC1}, {WS_UT}")
e(f"s_lshl4_add_u32 s{sP0F}, s{sCS}, s{sRB}")
e(f"s_lshl_b32 s{sP0F}, s{sP0F}, 6")
e(f"s_add_u32 s{sP0F}, s{sP0F}, {WS_FUT}")
e.wv(tX0)
stamp(3)
tks = {}
for dt in range(4):
    for tq in range(4):
        for hh in range(2):
            tks[dt] = e.d(f"ds_read_b64_tr_b16 {V(64 + 16 * dt + 4 * tq + 2 * hh, 2)}, v{vU0 + (dt ^ hh)} offset:{hh * 512 + tq * 4096}")
    e.tick(2)
trd = {}
for dt in range(4):
    e.wl(tks[dt])
    for tq in range(4):
        e.d(f"ds_write_b128 v{vSW}, {V(64 + 16 * dt + 4 * tq, 4)} offset:{(dt & 1) * 4352 + tq * 64}")
    for j in range(4):
        trd[dt, j] = e.d(f"ds_read_b128 {V(128 + 16 * dt + 4 * j, 4)}, v{vSR} offset:{(dt & 1) * 4352 + j * 1088}")
    e.tick(2)
for dt in range(4):
    for j in range(4):
        e(f"s_add_u32 s{sT[3]}, s{sC1}, {(16 * dt + 4 * j) * 4096}")
        e.wl(trd[dt, j])
        e.v(f"buffer_store_dwordx4 {V(128 + 16 * dt + 4 * j, 4)}, v{vUS}, {S(rWS, 4)}, s{sT[3]} offen {SC}")
e.flush_bg()
e.wv(tW0)
e("Lb_done:")
e.join()
stamp(4)

e("Lg1:")
e.join()
ACC = 64
FA, FB = (128, 160), (144, 176)
UTR = 192
vYR = vM + 5
e(f"v_mov_b32 v{vFA}, 0")
tk_tag = e.v(tag_load)
e("s_barrier")
stamp(5)
e(f"s_cmp_eq_u32 s{sGATE}, 27")
e("s_cbranch_scc1 Lg1gate")
st_g1 = e.state()


def g1(gate):
    rt = {}

    def reads(n):
        s, kk = divmod(n, 2)
        b = s % 3
        st, off = (1, 0) if b == 2 else (0, b * RING)
        p = n & 1

        def ra(i, hh):
            rt[n, "a", i] = e.d(f"ds_read_b64_tr_b16 {V(FA[p] + 4 * i + 2 * hh, 2)}, v{vTA + 4 * st + i} offset:{off + 16384 + kk * 8192 + hh * 1024}")

        def rb(i):
            rt[n, "b", i] = e.d(f"ds_read_b128 {V(FB[p] + 4 * i, 4)}, v{vXA + 2 * st + kk} offset:{off + i * 2048}")

        def rg():
            if kk == 0:
                e(f"s_lshl_b32 s{sT[3]}, s{sCS}, 7")
                e(f"s_add_u32 s{sT[3]}, s{sT[3]}, {L_GW}")
                e(f"v_lshl_add_u32 v{vGG}, v{vG}, 4, s{sT[3]}")
                adv(sCS)
            rt[n, "a", 0] = e.d(f"ds_read_b128 {V(FA[p], 4)}, v{vGG} offset:{64 * kk}")
        ops = [rg] if gate else [lambda: ra(0, 0), lambda: ra(0, 1)]
        ops += [lambda i=i: rb(i) for i in range(4)]
        if not gate:
            ops += [lambda i=i, hh=hh: ra(i, hh) for i in range(1, 4) for hh in range(2)]
        return ops

    stage_tk = {}
    at = {}

    def AT(g, fn):
        at.setdefault(g, []).append(fn)

    def plan_stage(s, g0, step):
        buf = (s % 3) * RING
        ops = stage_dma_ops(buf, setm0=False)

        def last(op=ops[-1]):
            stage_tk[s] = op()
        ops = ops[:-1] + [last]
        AT(g0 - 1, lambda: e(f"s_add_u32 m0, s{sLB}, {buf}"))
        AT(g0 + 4 * step - 1, lambda: e(f"s_add_u32 m0, s{sLB}, {buf + 16384}"))
        for i, op in enumerate(ops):
            AT(g0 + step * i, op)
        if s < 9:
            a, b, c, d = next_stage_ops()
            AT(g0 + 5 * step + 2, a)
            AT(g0 + 5 * step + 3, b)
            AT(g0 + 6 * step + 1, d)
            AT(g0 + 7 * step + 1, c)

    for op in next_stage_ops():
        op()
    for op in reads(0):
        op()
    e.smem = False
    plan_stage(2, 1, 2)
    for s in range(7):
        plan_stage(s + 3, 16 * (2 * s + 1) + 6, 4)
    CHK = OPT["chk"]
    for n in range(20):
        s, kk = divmod(n, 2)
        p = n & 1
        sync = kk == 1 and s + 1 < 10
        if n == CHK - 2:
            p0_flag_addr(True)
            tk_p0 = e.v(fl_load)
        if n == CHK:
            spin_check(tk_p0)
            stamp(14)
            e(f"s_lshl_b32 s{sT[1]}, s{sCH}, 12")
            e(f"s_add_u32 s{sT[1]}, s{sT[1]}, {WS_UT}")
            tUT = {}
            for j in range(4):
                e.bg.append(lambda j=j: tUT.__setitem__(j, e.v(f"buffer_load_dwordx4 {V(UTR + 4 * j, 4)}, v{vL16}, {S(rWS, 4)}, s{sT[1]} offen offset:{1024 * j} sc1")))
            for k in range(OPT["nw2"]):
                e.bg.append(lambda k=k: w2_load(k))
        if n == 19:
            e(f"v_add_u32 v{vYR}, s{sSSM}, v{vL16}")
            e.wv(tUT[3])
            rd = []
            for j in range(4):
                rd += [lambda j=j: e.d(f"ds_write_b128 v{vYR}, {V(UTR + 4 * j, 4)} offset:{512 + 1024 * j}")] + [lambda: None, lambda: None]
        else:
            rd = reads(n + 1)
        for k in range(16):
            i, j = divmod(k, 4)
            if sync and k == 4:
                e.wl()
                stamp(20 + 2 * s, grp=2)
                e.wv(tk_tag if s == 0 else stage_tk[s + 1])
                e("s_barrier")
                stamp(21 + 2 * s, grp=2)
                if s == 0:
                    get_tag(tk_tag)
                    store_flag(rST, sP0F, vFL)
            if i == 0 or not gate:
                if k == 0:
                    e.wl(rt[n, "b", 3])
                elif j == 0:
                    e.wl(rt[n, "a", i])
                a = ACC + 16 * i + 4 * j
                e(f"{MF} {V(a, 4)}, {V(FA[p] + 4 * i, 4)}, {V(FB[p] + 4 * j, 4)}, {'0' if n == 0 else V(a, 4)}")
            if (not sync or k >= 4) and rd:
                rd.pop(0)()
            for fn in at.pop(16 * n + k, []):
                fn()
            if (16 * n + k) % OPT["gper"] == 0:
                e.tick()
        assert not rd
    assert not at
    e.flush_bg()
    stamp(6)
    e(f"s_and_b32 s{sT[0]}, s{sW}, 1")
    e(f"s_lshl1_add_u32 s{sT[0]}, s{sRB}, s{sT[0]}")
    e(f"s_lshl_b32 s{sFL}, s{sT[0]}, 5")
    e(f"s_add_u32 s{sFL}, s{sFL}, s{sGATE}")
    e(f"s_lshl_b32 s{sFL}, s{sFL}, 6")
    e(f"s_add_u32 s{sFL}, s{sFL}, {WS_FH}")
    if gate:
        for j in range(1, 4):
            e(f"v_cmp_eq_u32 vcc, {j}, v{vG}")
            e(f"v_cndmask_b32 v{ACC}, v{ACC}, v{ACC + 4 * j}, vcc")
        e(f"v_mul_f32 v{ACC}, 0xbfb8aa3b, v{ACC}")
        e(f"v_exp_f32 v{ACC}, v{ACC}")
        e(f"v_add_f32 v{ACC}, 1.0, v{ACC}")
        e(f"v_rcp_f32 v{ACC}, v{ACC}")
        e(f"v_lshlrev_b32 v{vTMP}, 2, v{vLANE}")
        e(f"s_lshl_b32 s{sT[0]}, s{sT[0]}, 8")
        e(f"s_add_u32 s{sT[0]}, s{sT[0]}, {WS_G}")
        e.v(f"buffer_store_dword v{ACC}, v{vTMP}, {S(rWS, 4)}, s{sT[0]} offen {SC}")
    else:
        e(f"s_mul_i32 s{sT[1]}, s{sT[0]}, {4 * 55296}")
        e(f"s_lshl_b32 s{sT[3]}, s{sGATE}, 11")
        e(f"s_add_u32 s{sT[1]}, s{sT[1]}, s{sT[3]}")
        e(f"s_add_u32 s{sT[1]}, s{sT[1]}, {WS_HF}")
        for j in range(4):
            for pr in range(2):
                o = 128 + 4 * (2 * j + pr)
                for h in range(2):
                    a = ACC + 16 * (2 * pr + h) + 4 * j
                    e(f"v_cvt_pk_bf16_f32 v{o + 2 * h}, v{a}, v{a + 1}")
                    e(f"v_cvt_pk_bf16_f32 v{o + 2 * h + 1}, v{a + 2}, v{a + 3}")
                for q in range(4):
                    e(f"v_pk_max_i16 v{o + q}, v{o + q}, 0")
                if pr == 0 and j > 0:
                    e(f"s_add_u32 s{sT[1]}, s{sT[1]}, 55296")
                e.v(f"buffer_store_dwordx4 {V(o, 4)}, v{vL16}, {S(rWS, 4)}, s{sT[1]} offen offset:{1024 * pr} {SC}")


g1(False)
e("Lpost:")
tH = e.join()
e("s_barrier")
stamp(7)
e(f"s_cmp_eq_u32 s{sW}, 3")
e("s_cbranch_scc1 Lbeta2")
st_post = e.state()
nw2 = OPT["nw2"]

for k in range(nw2, 65):
    e.bg.append(lambda k=k: w2_load(k))
vUA, vTE, vTE2, vS, vYW = vM, vM + 1, vM + 2, vM + 3, vM + 4
CA, TF, UF, WO = 64, 96, 208, 228
T2, T3 = 164, 8
e(f"v_lshrrev_b32 v{vTMP}, 1, v{vI}")
e(f"v_lshlrev_b32 v{vTM2}, 2, v{vG}")
e(f"v_sub_u32 v{vTMP}, v{vTM2}, v{vTMP}")
e(f"v_lshlrev_b32 v{vTMP}, 2, v{vTMP}")
e(f"v_and_b32 v{vTE}, 1, v{vI}")
e(f"v_mul_u32_u24 v{vTE}, {K_O - K_E}, v{vTE}")
e(f"v_add3_u32 v{vTE}, v{vTE}, v{vTMP}, s{sSSM}")
e(f"v_add_u32 v{vTE}, {K_E + 28}, v{vTE}")
e(f"v_add_u32 v{vTE2}, 512, v{vTE}")
e(f"v_sub_u32 v{vTMP}, v{vTM2}, v{vI}")
e(f"v_lshlrev_b32 v{vTMP}, 2, v{vTMP}")
e(f"v_add_u32 v{vTMP}, {K_S2A + 60}, v{vTMP}")
e(f"v_add_u32 v{vS}, s{sSSM}, v{vTMP}")
e(f"v_lshlrev_b32 v{vTMP}, 5, v{vI}")
e(f"v_lshl_add_u32 v{vTM2}, v{vG}, 4, v{vTMP}")
e(f"v_add_u32 v{vUA}, s{sSSM}, v{vTM2}")
e(f"v_lshl_add_u32 v{vTM2}, v{vG}, 3, v{vTMP}")
e(f"v_add_u32 v{vYW}, s{sSSM}, v{vTM2}")
e.smem = False


def rd2(dst, addr, o):
    e.d(f"ds_read2_b32 {V(dst, 2)}, v{addr} offset0:{o} offset1:{o + 1}")
    return e.d(f"ds_read2_b32 {V(dst + 2, 2)}, v{addr} offset0:{o + 2} offset1:{o + 3}")


tT = {}


def t_read(q):
    o = 257 - 16 * q
    tT[q] = rd2(TF + 4 * q, vTE, o) if o + 3 <= 255 else rd2(TF + 4 * q, vTE2, o - 128)


useq = []
for i in range(-7, 57):
    useq.append(("U", i))
    if i >= 0 and i % 8 == 0 and i // 8 <= 5:
        useq.append(("P", i // 8))
tU = {}


def u_read(k):
    kind, i = useq[k]
    off = 480 + 64 * i if kind == "U" else 2 * (256 + 256 * i - 24)
    tU[k] = e.d(f"ds_read_b128 {V(UF + 4 * (k % 5), 4)}, v{vUA} offset:{off}")


for q in (7, 15):
    t_read(q)
u_read(0)
for q in (6, 14):
    t_read(q)
for k in range(1, 4):
    u_read(k)
side = []
for q in (5, 13, 4, 12, 3, 11, 2, 10, 1, 9, 0, 8, 16):
    side.append(lambda q=q: t_read(q))
tF = {}
for ab in range(2):
    for dl in (2, 3, 4):
        side.append(lambda ab=ab, dl=dl: tF.__setitem__((ab, dl), rd2(T2 + 4 * (3 * ab + dl - 2), vS, 64 * ab + 64 - 16 * dl)))
for dl in (4, 5, 6, 7):
    side.append(lambda dl=dl: tF.__setitem__((2, dl), rd2(T3 + 4 * (dl - 4), vS, 128 + 112 - 16 * dl)))

touched = set()
nmf = [0]
later = []
misc = {}


def mfma(acc, a, b, key=None):
    first = key is not None and key not in touched
    if key is not None:
        touched.add(key)
    c = "0" if (first or key is None) else V(acc, 4)
    e(f"{MF} {V(acc, 4)}, {a}, {b}, {c}")
    nmf[0] += 1
    if side:
        side.pop(0)()
    if nmf[0] % OPT['cper'] == 0:
        e.tick()
    if nmf[0] % 20 == 0:
        stamp(20 + nmf[0] // 20, grp=3)
    if nmf[0] == OPT["hflag_at"]:
        e.wv(tH)
        store_flag(rWS, sFL, vFL)
        stamp(19, grp=3)
    if nmf[0] == OPT["hchk_at"]:
        h_flag_addr()
        misc["hf"] = e.v(fl_load)
    for _ in range(2):
        if later and later[0][0] <= nmf[0] and later[0][2] == "v":
            later.pop(0)[1]()


def run_later_mfma():
    k = 0
    while later and later[0][0] <= nmf[0] and later[0][2] == "m" and k < 3:
        later.pop(0)[1]()
        k += 1


def finish_tile(a):
    def f():
        r = CA + 4 * a
        e(f"v_cvt_pk_bf16_f32 v{r}, v{r}, v{r + 1}")
        e(f"v_cvt_pk_bf16_f32 v{r + 1}, v{r + 2}, v{r + 3}")
        e.d(f"ds_write_b64 v{vYW}, {V(r, 2)} offset:{4608 + 512 * a}")
    return f


for k, (kind, i) in enumerate(useq):
    if k + 4 < len(useq):
        u_read(k + 4)
    e.wl(tU[k])
    u = V(UF + 4 * (k % 5), 4)
    if kind == "U":
        for a in range(8):
            q = 8 * a - i
            if 0 <= q <= 16:
                e.wl(tT[q])
                mfma(CA + 4 * a, V(TF + 4 * q, 4), u, key=a)
        if i >= 0 and i % 8 == 0:
            C = i // 8
            if C <= 3:
                mfma(CA + 4 * (C + 4), V(vBAND + 16, 4), u, key=C + 4)
            if C <= 5:
                assert not later, "window regs still in use"
                mfma(WO, u, V(vBAND, 4))
                mfma(WO + 4, u, V(vBAND + 4, 4))
                if C <= 3:
                    mfma(WO + 16, u, V(vBAND + 8, 4))
            else:
                later.append((nmf[0] + 3, finish_tile(C), "v"))
    else:
        C = i
        mfma(WO + 8, u, V(vBAND, 4))
        mfma(WO + 12, u, V(vBAND + 4, 4))
        if C <= 3:
            mfma(WO + 20, u, V(vBAND + 12, 4))
        t0 = nmf[0] + 3
        later.append((nmf[0], finish_tile(C), "v"))
        for z in range(3 if C <= 3 else 2):
            for r in range(4):
                later.append((t0 - (2 if z == 0 else 0), lambda z=z, r=r: e(f"v_cvt_pk_bf16_f32 v{WO + 8 * z + r}, v{WO + 8 * z + r}, v{WO + 8 * z + 4 + r}"), "v"))
            for dl in ((2, 3, 4) if z < 2 else (4, 5, 6, 7)):
                if C + dl <= 7:
                    def far(z=z, dl=dl, C=C):
                        e.wl(tF[(z, dl)])
                        tr = T2 + 4 * (3 * z + dl - 2) if z < 2 else T3 + 4 * (dl - 4)
                        mfma(CA + 4 * (C + dl), V(WO + 8 * z, 4), V(tr, 4), key=C + dl)
                    later.append((t0, far, "m"))
    run_later_mfma()
while later:
    later.pop(0)[1]()
print("conv mfma:", nmf[0], file=sys.stderr)
e.flush_bg()
tY = [e.d(f"ds_read_b128 {V(168 + 4 * j, 4)}, v{vYR} offset:{4608 + 1024 * j}") for j in range(4)]
e(f"s_mov_b32 s{rST + 2}, s{sYOK}")
e(f"s_lshl_b32 s{sT[0]}, s{sCH}, 12")
e(f"s_add_u32 s{sT[0]}, s{sT[0]}, {WS_YT}")
for j in range(4):
    e.wl(tY[j])
    e.v(f"buffer_store_dwordx4 {V(168 + 4 * j, 4)}, v{vL16}, {S(rST, 4)}, s{sT[0]} offen offset:{1024 * j} {SC}")
e(f"s_lshl_b32 s{sFL}, s{sCH}, 6")
e(f"s_add_u32 s{sFL}, s{sFL}, {WS_FY}")
stamp(8)
spin_check(misc["hf"])
e("s_branch Lg2_13")

e.restore(st_post)
e("Lbeta2:")
for k in range(nw2, 75):
    w2_load(k)
    if k == nw2 + 16:
        e.wv(tH)
        store_flag(rWS, sFL, vFL)
    if k == 66:
        h_flag_addr()
        tk = e.v(fl_load)
e(f"s_mov_b32 s{rST + 2}, 0")
stamp(8)
spin_check(tk, "lsleep")
e("s_branch Lg2_15")

e.restore(st_g1)
e("Lg1gate:")
g1(True)
e("s_branch Lpost")

e.restore(st_entry)
e("Lfree:")
e(f"s_lshl2_add_u32 s{sT[0]}, s{sXCD}, s{sSLOT}")
e(f"s_lshl_b32 s{sU}, s{sW}, 5")
e(f"s_add_u32 s{sU}, s{sU}, s{sT[0]}")
e(f"s_add_u32 s{sU}, s{sU}, 64")
e(f"s_lshl_b32 s{sLB}, s{sW}, 14")
e(f"v_mov_b32 v{vFA}, 0")
e.wl()
first_stamp()
e(f"s_cmp_lg_u32 s{sU}, 160")
e("s_cbranch_scc1 Lnononce")
e.raw(f"s_load_dwordx2 {S(sTAG, 2)}, {S(pWS, 2)}, 0")
e.raw("s_waitcnt lgkmcnt(0)")
e(f"s_mul_i32 s{sTAG}, s{sTAG}, 0x9e3779b1")
e(f"s_add_u32 s{sTAG}, s{sTAG}, 0x7f4a7c15")
e(f"s_mul_i32 s{sTAG + 1}, s{sTAG + 1}, 0x85ebca6b")
e(f"s_add_u32 s{sTAG + 1}, s{sTAG + 1}, s{sTAG}")
e(f"s_or_b32 s{sTAG + 1}, s{sTAG + 1}, 1")
e(f"v_mov_b32 v64, s{sTAG}")
e(f"v_mov_b32 v65, s{sTAG + 1}")
e("v_mov_b32 v66, 0")
e("s_mov_b64 exec, 1")
e.raw(f"global_store_dwordx2 v66, v[64:65], {S(pDBG, 2)} {SC}")
e.raw(f"global_store_dwordx2 v66, v[64:65], {S(pWS, 2)} {SC}")
e("s_mov_b64 exec, -1")
e("Lnononce:")
set_srds()
e(f"s_cmp_ge_u32 s{sU}, 135")
e("s_cbranch_scc1 Lg_nou")
tk = w2_unit_issue(vM, sLB, 0)
tr_addr0(vM + 2)
e(f"v_add_u32 v{vM + 2}, s{sLB}, v{vM + 2}")
e.wv(tk)
stamp(3)
tk_tag = e.v(tag_load)
tS = w2_unit_finish(tk, vM + 2, 64)
get_tag(tk_tag)
e.wv(tS)
store_flag(rWS, sP0F, vFL)
e("Lg_nou:")
e.join()
e("s_barrier")
tk_tag = e.v(tag_load)
get_tag(tk_tag)
stamp(4)
p0_flag_addr(False)
tk = e.v(fl_load)
spin_check(tk)
stamp(5)
for k in range(65):
    w2_load(k)
e(f"s_mov_b32 s{sFL}, 0")
lab = e.label("Lgs")
e(f"s_cmp_lg_u32 s{sW}, 3")
e(f"s_cbranch_scc1 {lab}")
for k in range(65, 75):
    w2_load(k)
e(f"{lab}:")
e.join()
h_flag_addr()
tk = e.v(fl_load)
stamp(8)
spin_check(tk)
e(f"s_cmp_lg_u32 s{sW}, 3")
e("s_cbranch_scc1 Lg2_13")
e("s_branch Lg2_15")


def g2(NK):
    e(f"Lg2_{NK}:")
    e.join()
    e.smem = False
    stamp(9)
    HR, NR = 64, 16
    AC = (128, 148)
    PRE, AT_, YL = 168, 188, 198
    vG_, vOM = 36, 37
    vOW, vOR, vOG = 38, 39, 42
    sM = [sT[0], sT[1], sT[2], sT[3]]
    sHBp = [sST, sCS, sGATE, sYOK]
    tHl = {}
    NT = 4 * NK
    PF = NR - 1

    def h_load(x):
        p, ksl = divmod(x, NK)
        e(f"s_add_u32 s{sT[4]}, s{sHBp[p]}, {ksl * 1024}")
        tHl[x] = e.v(f"buffer_load_dwordx4 {V(HR + 4 * (x % NR), 4)}, v{vL16}, {S(rWS, 4)}, s{sT[4]} offen sc1")

    e(f"s_mul_i32 s{sT[5]}, s{sW}, {13 * 1024}")
    e(f"s_add_u32 s{sT[5]}, s{sT[5]}, {WS_HF}")
    for p in range(4):
        e(f"s_add_u32 s{sM[p]}, s{sW}, {p + 1}")
        e(f"s_and_b32 s{sM[p]}, s{sM[p]}, 3")
        e(f"s_lshl2_add_u32 s{sHBp[p]}, s{sTB}, s{sM[p]}")
        e(f"s_mul_i32 s{sHBp[p]}, s{sHBp[p]}, 55296")
        e(f"s_add_u32 s{sHBp[p]}, s{sHBp[p]}, s{sT[5]}")
        if p == 0:
            for x in range(min(PF, NK)):
                h_load(x)
    for x in range(min(PF, NK), PF):
        h_load(x)
    for p in range(3):
        e(f"s_mul_i32 s{sT[4]}, s{sM[p]}, {3 * 5120}")
        e(f"s_add_u32 s{sT[4]}, s{sT[4]}, {L_PART + p * 5120}")
        e(f"v_add_u32 v{8 + p}, s{sT[4]}, v{vL16}")
    e(f"s_mul_i32 s{sT[4]}, s{sW}, {3 * 5120}")
    e(f"v_add_u32 v11, s{sT[4]}, v{vL16}")
    fill = []
    st = {}

    def F(fn):
        fill.append(fn)

    def ins(s):
        F(lambda: e(s))

    for x in range(NT):
        p, ksl = divmod(x, NK)
        acc = AC[p & 1]
        if ksl == 0 and p >= 1:
            pa = AC[(p - 1) & 1]
            wr = []
            for d in range(5):
                wr += [lambda d=d, pa=pa, p=p: e.d(f"ds_write_b128 v{8 + p - 1}, {V(pa + 4 * d, 4)} offset:{1024 * d}"), lambda: None, lambda: None, lambda: None]
            fill[0:0] = [lambda: None] * 8 + wr
        if p == 0 and ksl == 1:
            ins(f"s_mul_i32 s{sM[0]}, s{sDB}, 80")
            ins(f"s_mul_i32 s{sM[1]}, s{sW}, 20")
            ins(f"s_add_u32 s{sM[0]}, s{sM[0]}, s{sM[1]}")
            ins(f"v_min_u32 v{vFA}, 19, v{vLANE}")
            ins(f"v_add_u32 v{vFA}, s{sM[0]}, v{vFA}")
            ins(f"v_lshlrev_b32 v{vFA}, 6, v{vFA}")
            ins(f"v_add_u32 v{vFA}, {WS_FY}, v{vFA}")
            ins(f"s_lshl_b32 s{sM[0]}, s{sM[0]}, 12")
            ins(f"s_lshl_b32 s{sM[2]}, s{sTB}, 7")
            ins(f"s_add_u32 s{sM[0]}, s{sM[0]}, s{sM[2]}")
            ins(f"s_add_u32 s{sM[0]}, s{sM[0]}, {WS_YT}")
            ins(f"v_lshrrev_b32 v{vTMP}, 3, v{vLANE}")
            ins(f"v_and_b32 v{vTM2}, 7, v{vLANE}")
            ins(f"v_lshlrev_b32 v{vTM2}, 4, v{vTM2}")
            ins(f"v_lshl_add_u32 v12, v{vTMP}, 12, v{vTM2}")
            ins(f"v_add_u32 v{vTMP}, s{sM[1]}, v{vTMP}")
            ins(f"v_mul_u32_u24 v{vTMP}, 160, v{vTMP}")
            ins(f"v_add_u32 v13, v{vTMP}, v{vTM2}")
            ins(f"v_lshrrev_b32 v{vTMP}, 2, v{vI}")
            ins(f"v_lshl_add_u32 v{vTMP}, v{vG}, 2, v{vTMP}")
            ins(f"v_mul_u32_u24 v{vTMP}, 160, v{vTMP}")
            ins(f"v_and_b32 v{vTM2}, 3, v{vI}")
            ins(f"v_lshl_add_u32 v{vTMP}, v{vTM2}, 3, v{vTMP}")
            ins(f"s_lshl_b32 s{sM[2]}, s{sW}, 5")
            ins(f"s_add_u32 s{sM[2]}, s{sM[2]}, {L_AT}")
            ins(f"v_add_u32 v14, s{sM[2]}, v{vTMP}")
            ins(f"v_add_u32 v13, {L_AT}, v13")
            ins(f"s_mul_i32 s{sM[2]}, s{sW}, 2816")
            ins(f"s_add_u32 s{sM[2]}, s{sM[2]}, {L_OS}")
            ins(f"v_mul_u32_u24 v{vTMP}, 176, v{vI}")
            ins(f"v_lshl_add_u32 v{vTMP}, v{vG}, 3, v{vTMP}")
            ins(f"v_add_u32 v{vOW}, s{sM[2]}, v{vTMP}")
            for j in range(3):
                ins(f"v_add_u32 v15, {64 * j}, v{vLANE}")
                if j == 2:
                    ins("v_min_u32 v15, 159, v15")
                ins(f"v_mul_u32_u24 v{vTMP}, 6554, v15")
                ins(f"v_lshrrev_b32 v{vTMP}, 16, v{vTMP}")
                ins(f"v_mul_u32_u24 v{vTM2}, 10, v{vTMP}")
                ins(f"v_sub_u32 v{vTM2}, v15, v{vTM2}")
                ins(f"v_lshlrev_b32 v{vTM2}, 4, v{vTM2}")
                ins(f"v_mul_u32_u24 v15, 176, v{vTMP}")
                ins(f"v_add3_u32 v{vOR + j}, v15, v{vTM2}, s{sM[2]}")
                ins(f"v_mul_u32_u24 v15, 1280, v{vTMP}")
                ins(f"v_add_u32 v{vOG + j}, v15, v{vTM2}")
            ins(f"s_lshl2_add_u32 s{sM[2]}, s{sTB}, s{sW}")
            ins(f"s_mul_i32 s{sM[3]}, s{sM[2]}, {16 * 1280}")
            ins(f"s_mul_i32 s{sM[1]}, s{sDB}, 160")
            ins(f"s_add_u32 s{sM[3]}, s{sM[3]}, s{sM[1]}")
            ins(f"s_lshl_b32 s{sM[2]}, s{sM[2]}, 6")
            ins(f"s_add_u32 s{sM[2]}, s{sM[2]}, {WS_G}")
            ins(f"v_lshlrev_b32 v15, 2, v{vI}")
        if p == 2 and ksl == 0:
            st["fy"] = e.v(fl_load)
            st["g"] = e.v(f"buffer_load_dword v{vG_}, v15, {S(rWS, 4)}, s{sM[2]} offen sc1")
        if p == 2 and ksl == NK - 3:
            spin_check(st["fy"])
            for j in range(3):
                if j == 2:
                    setexec(0xffffffff)
                st["y%d" % j] = e.v(f"buffer_load_dwordx4 {V(YL + 4 * j, 4)}, v12, {S(rWS, 4)}, s{sM[0]} offen sc1")
                e(f"s_add_u32 s{sM[0]}, s{sM[0]}, {8 * 4096}")
            setexec(-1)
        if p == 3 and ksl == 4:
            while fill:
                fill.pop(0)()
            e.wv(st["y2"])
            for j in range(3):
                if j == 2:
                    setexec(0xffffffff)
                e.d(f"ds_write_b128 v13, {V(YL + 4 * j, 4)} offset:{8 * 160 * j}")
            setexec(-1)
            e.wl()
            e("s_barrier")
            stamp(10)
            oth = AC[0]
            for d in range(5):
                F(lambda d=d: e.d(f"ds_read_b128 {V(PRE + 4 * d, 4)}, v11 offset:{L_PART + 1024 * d}"))
                F(lambda d=d: e.d(f"ds_read_b128 {V(oth + 4 * d, 4)}, v11 offset:{L_PART + 5120 + 1024 * d}"))
                F(lambda d=d: e.d(f"ds_read_b128 {V(16 + 4 * d, 4)}, v11 offset:{L_PART + 10240 + 1024 * d}"))
                F(lambda d=d: st.__setitem__("at%d" % d, e.d(f"ds_read_b64_tr_b16 {V(AT_ + 2 * d, 2)}, v14 offset:{16 * 160 * d}")))
            ins(f"v_sub_f32 v{vOM}, 1.0, v{vG_}")
            for r in range(20):
                if r % 4 == 0:
                    F(lambda r=r: e.wl(st["at%d" % (r // 4)]))
                ins(f"v_add_f32 v{PRE + r}, v{PRE + r}, v{oth + r}")
                ins(f"v_add_f32 v{PRE + r}, v{PRE + r}, v{16 + r}")
                a = AT_ + r // 2
                ins(f"v_lshlrev_b32 v{16 + r}, 16, v{a}" if r % 2 == 0 else f"v_and_b32 v{16 + r}, 0xffff0000, v{a}")
                ins(f"v_mul_f32 v{16 + r}, v{vG_}, v{16 + r}")
                ins(f"v_fma_f32 v{PRE + r}, v{PRE + r}, v{vOM}, v{16 + r}")
        if x % 4 == 0:
            stamp(20 + x // 4, grp=4)
        if x + PF < NT:
            h_load(x + PF)
        e.wv(tHl[x])
        if x == 0:
            store_flag(rST, sFL, vFT)
        for d in range(5):
            c = "0" if ksl == 0 else V(acc + 4 * d, 4)
            e(f"{MF} {V(acc + 4 * d, 4)}, {w2_reg(5 * ksl + d)}, {V(HR + 4 * (x % NR), 4)}, {c}")
            for _ in range(2):
                if fill:
                    fill.pop(0)()
    while fill:
        fill.pop(0)()
    stamp(11)
    acc = AC[1]
    for d in range(5):
        for r in range(4):
            e(f"v_fma_f32 v{PRE + 4 * d + r}, v{acc + 4 * d + r}, v{vOM}, v{PRE + 4 * d + r}")
        e(f"v_cvt_pk_bf16_f32 v{PRE + 4 * d}, v{PRE + 4 * d}, v{PRE + 4 * d + 1}")
        e(f"v_cvt_pk_bf16_f32 v{PRE + 4 * d + 1}, v{PRE + 4 * d + 2}, v{PRE + 4 * d + 3}")
        e.d(f"ds_write_b64 v{vOW}, {V(PRE + 4 * d, 2)} offset:{32 * d}")
    to = [e.d(f"ds_read_b128 {V(64 + 4 * j, 4)}, v{vOR + j}") for j in range(3)]
    for j in range(3):
        e.wl(to[j])
        if j == 2:
            setexec(0xffffffff)
        e.v(f"buffer_store_dwordx4 {V(64 + 4 * j, 4)}, v{vOG + j}, {S(rOUT, 4)}, s{sM[3]} offen")
    if OPT["stamp"]:
        setexec(-1)
        e.wv()
        stamp(12)
        stamp(13, rt=True)
        e(f"s_lshl2_add_u32 s{sT[0]}, s2, s{sW}")
        e(f"s_lshl_b32 s{sT[0]}, s{sT[0]}, 8")
        e(f"s_add_u32 s{sT[0]}, s{sT[0]}, {WS_STAMP}")
        e(f"v_lshlrev_b32 v{vTMP}, 2, v{vLANE}")
        e.v(f"buffer_store_dword v{vSTAMP}, v{vTMP}, {S(rWS, 4)}, s{sT[0]} offen")
    if OPT["dbgtime"] and NK == 15:
        lab = e.label("Ldt")
        e.wv()
        e("s_and_b32 s92, s2, 31")
        e("s_cmp_lg_u32 s92, 0")
        e(f"s_cbranch_scc1 {lab}")
        e("s_cmp_ge_u32 s2, 224")
        e(f"s_cbranch_scc1 {lab}")
        e.raw("s_memrealtime s[92:93]")
        e.raw("s_waitcnt lgkmcnt(0)")
        e("v_mov_b32 v8, s94")
        e("v_mov_b32 v9, s92")
        e("s_lshr_b32 s92, s2, 2")
        e("s_add_u32 s92, s92, 8")
        e("v_mov_b32 v10, s92")
        e("s_mov_b64 exec, 1")
        e.raw(f"global_store_dwordx2 v10, v[8:9], {S(pDBG, 2)}")
        e(f"{lab}:")
    e("s_endpgm")


g2(13)
g2(15)
e("Lend:")
e("s_endpgm")

body, nn = insert_nops(e.L)
if OPT["align"]:
    body, nw, npad, size = align_pass(body)
    print("widened:", nw, "pads:", npad, "bytes:", size, file=sys.stderr)
print("instructions:", len(body), "nops inserted:", nn, file=sys.stderr)
hdr = open("gated_mix__ssm_conv_s4__dense_activation_relu__prompt.s.ref").read().split("; Override launch")[0]
out = [hdr.rstrip("\n"),
       "; generated by work/gen.py (hand-written generator)",
       "; @launch grid=(256,1,1) block=(256,1,1) lds=163840",
       '.amdgcn_target "amdgcn-amd-amdhsa--gfx950"', ".text", f".globl {KN}", ".p2align 8", f".type {KN},@function"]
out += body
out += ['.section .rodata,"a"', ".p2align 6", f".amdhsa_kernel {KN}",
        "  .amdhsa_next_free_vgpr 512", "  .amdhsa_next_free_sgpr 102", "  .amdhsa_accum_offset 256",
        "  .amdhsa_group_segment_fixed_size 0", "  .amdhsa_kernarg_size 128", "  .amdhsa_user_sgpr_count 2",
        "  .amdhsa_user_sgpr_kernarg_segment_ptr 1", "  .amdhsa_system_sgpr_workgroup_id_x 1", ".end_amdhsa_kernel"]
open(sys.argv[1], "w").write("\n".join(out) + "\n")
```

```python
import sys
from asmlib import *

KN = "gated_mix__ssm_conv_s4__dense_activation_relu__prompt_kernel"
OPT = dict(stamp=0, kst=0, dbgtime=0, align=1, spin=20000, sleep=4, lsleep=8, nt=3, tlb=1,
           chk=15, nw2=10, gper=5, btick=12, hflag_at=45, cstart=50, cper=4, hchk_at=150, hlag=20, npre=15, bout=8,
           yfl=10, xfl=4, yf=14, yl=6, fr=1, hsc=1)
for a in sys.argv[2:]:
    k, v = a.split("=")
    assert k in OPT, k
    OPT[k] = int(v)

WS_FUT = 0x1000
WS_FW2 = 0x4000
WS_FH = 0x8000
WS_FY = 0x20000
WS_G = 0x30000
WS_FX = 0x40000
UTP, YTP = 4352, 4224
KS = 56 * 1024
WS_UT = 0x100000
WS_YT = 0x400000
WS_W2F = 0x700000
WS_HF = 0xA00000
WS_XB = 0x1100000
WS_END = 0x1380000
WS_STAMP = 0x2000000
WS_SIZE = 0x2100000 if OPT["stamp"] else WS_END

sW, sXCD, sSLOT, sXR, sXC, sRB, sCB, sTB, sDB, sST, sCS, sGATE, sYOK = 3, 4, 5, 6, 7, 8, 9, 10, 11, 12, 13, 14, 15
pU, pARE, pAIM, pBRE, pBIM, pCRE, pCIM, pLDT, pDSK, pW1, pW2, pGW, pOUT, pDBG, pWS = 16, 18, 20, 22, 24, 26, 28, 30, 32, 36, 38, 40, 42, 44, 46
sHBp = list(range(18, 26))
sYB, sOB, sGB, sXO, sXI, sXF = 26, 27, 28, 29, 34, 35
rX, rW, rWS, rOUT, rST, sTAG, rW2 = 48, 52, 56, 60, 64, 68, 96
sXB, sWB, sLB = 70, 71, 72
sT = [73, 74, 75, 76, 77, 78, 79]
sCH, sLDT, sDSK, sP0F, sW2B, sU, sSPIN, sSSM, sC1, sC2, sFL, sKS = 80, 81, 82, 83, 84, 85, 86, 87, 90, 91, 100, 101

vLANE, vI, vG, vSTAMP, vL16, vTMP, vTM2 = 1, 2, 3, 4, 5, 6, 7
vDX, vDW, vXA, vTA = 8, 12, 16, 20
vBAND = 28
vSTW, vSTR, vST8, vA0, vA1, vA2, vA3, vA4 = range(48, 56)
vFL, vZ, vGG, vFT = 56, 58, 59, 60
vUA, vTE, vTE2, vS, vYW, vFP, vFH = range(224, 231)
vP, vFY, vYG, vAW, vAR, vX, vL8, vOW, vOR, vOG = 231, 235, 236, 237, 238, 239, 240, 241, 242, 245
HR = 160
YST = 144
RING = 32768
L_SSM, SSM_SZ = 98304, 12288
K_E, K_O, K_S2A, K_S2B, K_S3 = 8704, 8704 + 1216, 8704 + 2432, 8704 + 2432 + 256, 8704 + 2432 + 512
L_AT = 122880
L_UNIT, L_SCR, L_GW = 135168, 151552, 160512

e = Em()
misc = {}
MF = "v_mfma_f32_16x16x32_bf16"
SC = "sc1"
NK = 7
tag_load = f"global_load_dwordx2 {V(vFL, 2)}, v{vZ}, {S(pDBG, 2)} sc1"


def fl_load(va):
    return f"buffer_load_dwordx2 {V(vFL, 2)}, v{va}, {S(rWS, 4)}, 0 offen sc1"


def setexec(mask):
    if mask == -1:
        e("s_mov_b64 exec, -1")
    else:
        e(f"s_mov_b32 exec_lo, {mask & 0xffffffff:#x}")
        e(f"s_mov_b32 exec_hi, {mask >> 32:#x}")


def stamp(k, rt=False, grp=1):
    if not OPT["stamp"] or (k >= 19 and OPT["kst"] != grp):
        return
    e.s(f"s_mem{'real' if rt else ''}time s[94:95]")
    e.wl()
    e(f"v_writelane_b32 v{vSTAMP}, s94, {k}")


def first_stamp():
    if OPT["stamp"]:
        e(f"v_writelane_b32 v{vSTAMP}, s92, 0")
        e(f"v_writelane_b32 v{vSTAMP}, s94, 1")
        stamp(2)


cold = []


def spin_check(tk, va, sl="sleep"):
    lp, dn = e.label("Lsp"), e.label("Lsd")
    e.wv(tk)
    e(f"v_cmp_ne_u64 vcc, {S(sTAG, 2)}, {V(vFL, 2)}")
    e(f"s_cbranch_vccnz {lp}")
    e(f"{dn}:")
    cold.extend([f"{lp}:", f"s_mov_b32 s{sSPIN}, 0", f"{lp}x:", f"s_sleep {OPT[sl]}", fl_load(va), "s_waitcnt vmcnt(0)",
                 f"v_cmp_ne_u64 vcc, {S(sTAG, 2)}, {V(vFL, 2)}", f"s_cbranch_vccz {dn}",
                 f"s_add_u32 s{sSPIN}, s{sSPIN}, 1", f"s_cmp_gt_u32 s{sSPIN}, {OPT['spin']}", f"s_cbranch_scc1 {dn}", f"s_branch {lp}x"])


def get_tag(tk):
    lp, dn = e.label("Ltg"), e.label("Ltd")
    e.wv(tk)
    e(f"v_readfirstlane_b32 s{sTAG + 1}, v{vFL + 1}")
    e(f"v_readfirstlane_b32 s{sTAG}, v{vFL}")
    e(f"s_cmp_eq_u32 s{sTAG + 1}, 0")
    e(f"s_cbranch_scc1 {lp}")
    e(f"{dn}:")
    cold.extend([f"{lp}:", f"s_mov_b32 s{sSPIN}, 0", f"{lp}x:", f"s_sleep {OPT['sleep']}", tag_load, "s_waitcnt vmcnt(0)",
                 f"v_readfirstlane_b32 s{sTAG + 1}, v{vFL + 1}", f"v_readfirstlane_b32 s{sTAG}, v{vFL}",
                 f"s_add_u32 s{sSPIN}, s{sSPIN}, 1", f"s_cmp_lg_u32 s{sTAG + 1}, 0", f"s_cbranch_scc1 {dn}",
                 f"s_cmp_gt_u32 s{sSPIN}, {OPT['spin']}", f"s_cbranch_scc1 {dn}", f"s_branch {lp}x"])
    e(f"v_mov_b32 v{vFT}, s{sTAG}")
    e(f"v_mov_b32 v{vFT + 1}, s{sTAG + 1}")


def store_flag(srd, soff):
    e("s_mov_b64 exec, 1")
    e.v(f"buffer_store_dwordx2 {V(vFT, 2)}, off, {S(srd, 4)}, s{soff} {SC}")
    e("s_mov_b64 exec, -1")


def tr_addr0(dst):
    e(f"v_lshrrev_b32 v{vTMP}, 2, v{vI}")
    e(f"v_and_b32 v{vTM2}, 1, v{vG}")
    e(f"v_lshl_or_b32 v{vTM2}, v{vTM2}, 2, v{vTMP}")
    e(f"v_lshl_add_u32 v{vTMP}, v{vG}, 3, v{vTMP}")
    e(f"v_lshlrev_b32 v{vTMP}, 8, v{vTMP}")
    e(f"v_lshl_add_u32 v{vTMP}, v{vTM2}, 5, v{vTMP}")
    e(f"v_and_b32 v{vTM2}, 3, v{vI}")
    e(f"v_lshl_add_u32 v{dst}, v{vTM2}, 3, v{vTMP}")


def wide_dma_addr(dst, pitch, d1=1):
    e(f"v_lshlrev_b32 v{vTMP}, 1, v{vG}")
    e(f"v_xor_b32 v{vTMP}, v{vTMP}, v{vI}")
    e(f"v_mul_u32_u24 v{vTM2}, {pitch}, v{vG}")
    e(f"v_lshl_add_u32 v{dst}, v{vTMP}, 4, v{vTM2}")
    e(f"v_xor_b32 v{vTMP}, 8, v{vTMP}")
    e(f"v_lshl_add_u32 v{dst + d1}, v{vTMP}, 4, v{vTM2}")


def w2_reg(dtl, ksl):
    return A(108 + 4 * (NK * dtl + ksl), 4)


W2ORD = list(range(5, 35)) + list(range(5))
w2cur = [None]


def w2_load(n):
    dtl, ksl = divmod(n, NK)
    if w2cur[0] != (dtl, ksl >> 2):
        w2cur[0] = (dtl, ksl >> 2)
        e(f"s_add_u32 s{sT[4]}, s{sW2B}, {dtl * KS + (ksl >> 2) * 4096}")
    return e.v(f"buffer_load_dwordx4 {w2_reg(dtl, ksl)}, v{vL16}, {S(rWS, 4)}, s{sT[4]} offen offset:{(ksl & 3) * 1024} sc1")


tHl = {}


def h_load(x):
    p, ksl = divmod(x, NK)
    if ksl == 4:
        e(f"s_add_u32 s{sHBp[p]}, s{sHBp[p]}, 4096")
    tHl[x] = e.v(f"buffer_load_dwordx4 {V(HR + 4 * (x % 16), 4)}, v{vL16}, {S(rWS, 4)}, s{sHBp[p]} offen offset:{(ksl & 3) * 1024} sc1")


def set_srds():
    for r, p in ((rX, pU), (rW, pW1), (rWS, pWS), (rOUT, pOUT), (rST, pWS), (rW2, pW2)):
        e(f"s_mov_b64 {S(r, 2)}, {S(p, 2)}")


def late_addrs(with_ut):
    e(f"s_lshr_b32 s{sT[0]}, s{sKS}, 1")
    e(f"v_bfe_u32 v{vTMP}, v{vLANE}, 1, 2")
    e(f"v_add_u32 v{vTMP}, s{sT[0]}, v{vTMP}")
    e(f"v_mul_u32_u24 v{vTMP}, 5, v{vTMP}")
    e(f"s_mul_i32 s{sT[1]}, s{sDB}, 5")
    e(f"v_and_b32 v{vTM2}, 1, v{vLANE}")
    e(f"v_lshl_add_u32 v{vTM2}, v{vTM2}, 2, s{sT[1]}")
    e(f"v_lshrrev_b32 v{vTM2}, 3, v{vTM2}")
    e(f"v_add_lshl_u32 v{vTMP}, v{vTMP}, v{vTM2}, 6")
    e(f"v_add_u32 v{vFP}, {WS_FW2}, v{vTMP}")
    if with_ut:
        e(f"s_lshr_b32 s{sT[1]}, s{sCH}, 6")
        e(f"s_lshl_b32 s{sT[1]}, s{sT[1]}, 10")
        e(f"s_add_u32 s{sT[1]}, s{sT[1]}, {WS_FUT}")
        e(f"v_lshl_add_u32 v{vTMP}, v{vI}, 6, s{sT[1]}")
        e(f"v_cmp_lt_u32 vcc, 31, v{vLANE}")
        e(f"v_cndmask_b32 v{vFP}, v{vFP}, v{vTMP}, vcc")
    e(f"v_and_b32 v{vTMP}, 3, v{vLANE}")
    e(f"v_add_u32 v{vTMP}, s{sT[0]}, v{vTMP}")
    e(f"v_and_b32 v{vTM2}, 4, v{vLANE}")
    e(f"v_lshl_add_u32 v{vTMP}, v{vTM2}, 3, v{vTMP}")
    e(f"v_cmp_gt_u32 vcc, 8, v{vLANE}")
    e(f"s_lshl_b32 s{sT[0]}, s{sTB}, 5")
    e(f"v_cndmask_b32 v{vTMP}, 27, v{vTMP}, vcc")
    e(f"v_xor_b32 v{vTMP}, s{sT[0]}, v{vTMP}")
    e(f"v_lshlrev_b32 v{vTMP}, 6, v{vTMP}")
    e(f"v_add_u32 v{vFH}, {WS_FH}, v{vTMP}")
    e(f"s_lshl_b32 s{sT[1]}, s{sKS}, 10")
    e(f"s_add_u32 s{sT[1]}, s{sT[1]}, {WS_HF}")
    for p in range(4):
        e(f"s_add_u32 s{sT[0]}, s{sW}, {p + 1}")
        e(f"s_and_b32 s{sT[0]}, s{sT[0]}, 3")
        e(f"s_lshl2_add_u32 s{sHBp[4 + p]}, s{sTB}, s{sT[0]}")
        e(f"s_xor_b32 s{sHBp[p]}, s{sHBp[4 + p]}, 4")
        for q in (p, 4 + p):
            e(f"s_mul_i32 s{sHBp[q]}, s{sHBp[q]}, {KS}")
            e(f"s_add_u32 s{sHBp[q]}, s{sHBp[q]}, s{sT[1]}")
        e(f"s_mul_i32 s{sT[0]}, s{sT[0]}, {3 * 5120}")
        e(f"v_add_u32 v{vP + p}, s{sT[0]}, v{vL16}")
    e(f"s_mul_i32 s{sYB}, s{sDB}, 80")
    e(f"s_mul_i32 s{sT[1]}, s{sW}, 20")
    e(f"s_add_u32 s{sYB}, s{sYB}, s{sT[1]}")
    e(f"v_add_lshl_u32 v{vTMP}, v{vLANE}, s{sYB}, 6")
    e(f"v_add_u32 v{vTMP}, {WS_FY}, v{vTMP}")
    e(f"s_lshl2_add_u32 s{sXO}, s2, s{sW}")
    e(f"s_xor_b32 s{sXI}, s{sXO}, 4")
    e(f"s_lshl_b32 s{sXF}, s{sXI}, 6")
    e(f"s_add_u32 s{sXF}, s{sXF}, {WS_FX}")
    e(f"v_mov_b32 v{vTM2}, s{sXF}")
    e(f"v_cmp_lt_u32 vcc, 19, v{vLANE}")
    e(f"s_xor_b32 s{sXF}, s{sXF}, 256")
    e(f"s_mul_i32 s{sXO}, s{sXO}, 2560")
    e(f"v_cndmask_b32 v{vFY}, v{vTMP}, v{vTM2}, vcc")
    e(f"s_add_u32 s{sXO}, s{sXO}, {WS_XB}")
    e(f"s_mul_i32 s{sXI}, s{sXI}, 2560")
    e(f"s_add_u32 s{sXI}, s{sXI}, {WS_XB}")
    e(f"v_lshlrev_b32 v{vL8}, 3, v{vLANE}")
    e(f"s_mul_i32 s{sYB}, s{sYB}, {YTP}")
    e(f"s_lshl_b32 s{sT[0]}, s{sTB}, 7")
    e(f"s_add_u32 s{sYB}, s{sYB}, s{sT[0]}")
    e(f"s_add_u32 s{sYB}, s{sYB}, {WS_YT}")
    e(f"v_lshrrev_b32 v{vTMP}, 3, v{vLANE}")
    e(f"v_and_b32 v{vTM2}, 0x70, v{vL16}")
    e(f"v_mul_u32_u24 v{vYG}, {YTP}, v{vTMP}")
    e(f"v_add_u32 v{vYG}, v{vYG}, v{vTM2}")
    e(f"v_add_u32 v{vTMP}, s{sT[1]}, v{vTMP}")
    e(f"v_mul_u32_u24 v{vTMP}, 160, v{vTMP}")
    e(f"v_add_u32 v{vTMP}, {L_AT}, v{vTMP}")
    e(f"v_add_u32 v{vAW}, v{vTMP}, v{vTM2}")
    e(f"v_lshrrev_b32 v{vTMP}, 2, v{vLANE}")
    e(f"v_mul_u32_u24 v{vTMP}, 160, v{vTMP}")
    e(f"v_and_b32 v{vTM2}, 0x18, v{vL8}")
    e(f"s_lshl_b32 s{sT[0]}, s{sW}, 5")
    e(f"s_add_u32 s{sT[0]}, s{sT[0]}, {L_AT}")
    e(f"v_add3_u32 v{vAR}, v{vTMP}, v{vTM2}, s{sT[0]}")
    e(f"s_mul_i32 s{sT[0]}, s{sW}, 2816")
    e(f"v_mul_u32_u24 v{vTMP}, 176, v{vI}")
    e(f"v_lshl_add_u32 v{vTMP}, v{vG}, 3, v{vTMP}")
    e(f"v_add_u32 v{vOW}, s{sT[0]}, v{vTMP}")
    for j in range(3):
        e(f"v_add_u32 v{vX}, {64 * j}, v{vLANE}")
        e(f"v_mul_u32_u24 v{vTMP}, 6554, v{vX}")
        e(f"v_lshrrev_b32 v{vTMP}, 16, v{vTMP}")
        e(f"v_add_lshl_u32 v{vTM2}, v{vX}, v{vTMP}, 4")
        e(f"v_add_u32 v{vOR + j}, s{sT[0]}, v{vTM2}")
        e(f"v_mul_u32_u24 v{vTMP}, 1104, v{vTMP}")
        e(f"v_add_u32 v{vOG + j}, v{vTMP}, v{vTM2}")
    e(f"s_lshl2_add_u32 s{sGB}, s{sTB}, s{sW}")
    e(f"s_mul_i32 s{sOB}, s{sGB}, {16 * 1280}")
    e(f"s_mul_i32 s{sT[0]}, s{sDB}, 160")
    e(f"s_add_u32 s{sOB}, s{sOB}, s{sT[0]}")
    e(f"s_lshl_b32 s{sGB}, s{sGB}, 6")
    e(f"s_add_u32 s{sGB}, s{sGB}, {WS_G}")
    e(f"v_lshlrev_b32 v{vX}, 2, v{vI}")


def w2_unit_issue(vad, lds_sg, lds_imm):
    wide_dma_addr(vad, 1280)
    e(f"s_mul_i32 s{sT[0]}, s{sU}, 13108")
    e(f"s_lshr_b32 s{sT[0]}, s{sT[0]}, 16")
    e(f"s_mul_i32 s{sT[1]}, s{sT[0]}, 5")
    e(f"s_sub_u32 s{sT[1]}, s{sU}, s{sT[1]}")
    e(f"s_mul_i32 s{sC2}, s{sT[0]}, {64 * 1280}")
    e(f"s_lshl_b32 s{sT[2]}, s{sT[1]}, 8")
    e(f"s_add_u32 s{sC2}, s{sC2}, s{sT[2]}")
    for m in range(16):
        row = 32 * (m >> 3) + 16 * (m & 1) + 4 * ((m >> 1) & 3)
        e(f"s_mov_b32 m0, {lds_imm + m * 1024}" if lds_sg is None else f"s_add_u32 m0, s{lds_sg}, {lds_imm + m * 1024}")
        e(f"s_add_u32 s{sT[5]}, s{sC2}, {row * 1280}")
        t = e.v(f"buffer_load_dwordx4 v{vad + ((m >> 1) & 1)}, {S(rW2, 4)}, s{sT[5]} offen {'nt ' if OPT['nt'] & 1 else ''}lds")
        if m == 7:
            misc["half"] = t
    e(f"s_mul_i32 s{sC1}, s{sT[1]}, {8 * KS}")
    e(f"s_lshl_b32 s{sT[2]}, s{sT[0]}, 11")
    e(f"s_add_u32 s{sC1}, s{sC1}, s{sT[2]}")
    e(f"s_add_u32 s{sC1}, s{sC1}, {WS_W2F}")
    e(f"s_lshl_b32 s{sP0F}, s{sU}, 6")
    e(f"s_add_u32 s{sP0F}, s{sP0F}, {WS_FW2}")
    return t


def w2_unit_out(vbase, F, kks):
    tks = {}
    for ft in range(8):
        e(f"v_xor_b32 v{vTMP}, {ft << 5}, v{vbase}")
        for kk in kks:
            for hh in range(2):
                tks[ft, kk] = e.d(f"ds_read_b64_tr_b16 {V(F + 8 * ft + 4 * kk + 2 * hh, 2)}, v{vTMP} offset:{kk * 8192 + hh * 1024}")
    for ft in range(8):
        e(f"s_add_u32 s{sT[3]}, s{sC1}, {ft * KS}")
        for kk in kks:
            e.wl(tks[ft, kk])
            t = e.v(f"buffer_store_dwordx4 {V(F + 8 * ft + 4 * kk, 4)}, v{vL16}, {S(rWS, 4)}, s{sT[3]} offen offset:{1024 * kk} {SC}")
    return t


def tlb_touch():
    e(f"s_mul_i32 s{sT[0]}, s{sSLOT}, 3")
    e(f"s_add_u32 s{sT[0]}, s{sT[0]}, s{sW}")
    e(f"s_mul_i32 s{sT[0]}, s{sT[0]}, 5")
    e(f"v_add_lshl_u32 v{vTMP}, v{vLANE}, s{sT[0]}, 16")
    e(f"v_subrev_u32 v{vTM2}, {312 << 16}, v{vTMP}")
    e("s_mov_b64 exec, 31")
    e.v(f"buffer_load_dword v62, v{vTMP}, {S(rWS, 4)}, 0 offen offset:64 sc1")
    e.v(f"buffer_load_dword v62, v{vTM2}, {S(rOUT, 4)}, 0 offen sc1")
    e("s_mov_b64 exec, -1")


e(f"{KN}:")
e("s_cmp_ge_u32 s2, 256")
e("s_cbranch_scc1 Lend")
e.s("s_load_dwordx16 s[16:31], s[0:1], 0")
e.s("s_load_dwordx16 s[32:47], s[0:1], 64")
if OPT["stamp"]:
    e.raw("s_memtime s[92:93]")
if OPT["stamp"] or OPT["dbgtime"]:
    e.raw("s_memrealtime s[94:95]")
e("s_getpc_b64 s[88:89]")
e("Lpc:")
e(f"v_lshrrev_b32 v{vTMP}, 6, v0")
e(f"v_and_b32 v{vLANE}, 63, v0")
e(f"v_readfirstlane_b32 s{sW}, v{vTMP}")
e(f"v_and_b32 v{vI}, 15, v0")
e(f"v_bfe_u32 v{vG}, v0, 4, 2")
e(f"v_lshlrev_b32 v{vL16}, 4, v{vLANE}")
e(f"s_and_b32 s{sXCD}, s2, 7")
e(f"s_lshr_b32 s{sSLOT}, s2, 3")
e(f"s_lshl2_add_u32 s{sT[0]}, s{sSLOT}, s{sW}")
e(f"s_mul_i32 s{sT[0]}, s{sT[0]}, 384")
e(f"v_and_b32 v{vTMP}, 3, v0")
e(f"v_lshl_add_u32 v{vTMP}, v{vTMP}, 7, s{sT[0]}")
e(f"v_min_u32 v{vTMP}, Lend-Lpc, v{vTMP}")
e.v(f"global_load_dword v62, v{vTMP}, s[88:89]")
e(f"v_mov_b32 v{vZ}, 0")
e(f"s_lshr_b32 s{sXR}, s{sXCD}, 1")
e(f"s_and_b32 s{sXC}, s{sXCD}, 1")
e(f"s_lshr_b32 s{sT[0]}, s{sSLOT}, 3")
e(f"s_lshl2_add_u32 s{sT[0]}, s{sXR}, s{sT[0]}")
e(f"s_lshl1_add_u32 s{sTB}, s{sT[0]}, s{sXC}")
e(f"s_and_b32 s{sDB}, s{sSLOT}, 7")
e(f"s_lshl_b32 s{sLB}, s{sW}, 12")
e(f"s_lshl2_add_u32 s{sKS}, s{sXC}, s{sW}")
e(f"s_mul_i32 s{sKS}, s{sKS}, 7")
e(f"s_mul_i32 s{sW2B}, s{sDB}, {5 * KS}")
e(f"s_lshl_b32 s{sT[0]}, s{sKS}, 10")
e(f"s_add_u32 s{sW2B}, s{sW2B}, s{sT[0]}")
e(f"s_add_u32 s{sW2B}, s{sW2B}, {WS_W2F}")
for r, sz in ((rX, 2621440), (rW, 2211840), (rWS, WS_SIZE), (rOUT, 2621440), (rST, 0), (rW2, 2211840)):
    e(f"s_mov_b32 s{r + 2}, {sz}")
    e(f"s_mov_b32 s{r + 3}, 0x20000")
e(f"s_mov_b32 s{sP0F}, 0")
e(f"s_cmp_lt_u32 s{sSLOT}, 4")
e("s_cbranch_scc1 Lfree")
st_entry = e.state()
e(f"s_sub_u32 s{sSLOT}, s{sSLOT}, 4")

e(f"s_and_b32 s{sT[0]}, s{sSLOT}, 3")
e(f"s_lshl2_add_u32 s{sRB}, s{sXR}, s{sT[0]}")
e(f"s_lshr_b32 s{sT[1]}, s{sSLOT}, 2")
e(f"s_mul_i32 s{sCB}, s{sXC}, 7")
e(f"s_add_u32 s{sCB}, s{sCB}, s{sT[1]}")
e(f"s_mul_i32 s{sT[0]}, s{sT[0]}, 5")
e(f"s_lshr_b32 s{sT[0]}, s{sT[0]}, 1")
e(f"s_mul_i32 s{sT[1]}, s{sCB}, 3")
e(f"s_add_u32 s{sST}, s{sT[0]}, s{sT[1]}")
e(f"s_mul_i32 s{sT[0]}, s{sST}, 6554")
e(f"s_lshr_b32 s{sT[0]}, s{sT[0]}, 16")
e(f"s_mul_i32 s{sT[0]}, s{sT[0]}, 10")
e(f"s_sub_u32 s{sST}, s{sST}, s{sT[0]}")
e(f"s_mov_b32 s{sCS}, s{sST}")
e(f"s_mul_i32 s{sCH}, s{sXCD}, 28")
e(f"s_add_u32 s{sCH}, s{sCH}, s{sSLOT}")
e(f"s_mul_i32 s{sCH}, s{sCH}, 3")
e(f"s_add_u32 s{sCH}, s{sCH}, s{sW}")
e(f"s_cmp_lt_u32 s{sCH}, 640")
e(f"s_cselect_b32 s{sYOK}, {WS_SIZE}, 0")
e(f"s_min_u32 s{sCH}, s{sCH}, 639")
e(f"s_lshl_b32 s{sT[0]}, s{sCH}, 8")
e(f"v_lshl_add_u32 v63, v{vLANE}, 2, s{sT[0]}")
e(f"v_lshrrev_b32 v{vTMP}, 3, v{vLANE}")
e(f"v_mul_u32_u24 v{vTM2}, 1280, v{vTMP}")
e(f"v_and_b32 v{vTMP}, 7, v{vLANE}")
e(f"v_xor_b32 v{vTMP}, v{vTMP}, v{vG}")
e(f"v_lshl_add_u32 v{vDX}, v{vTMP}, 4, v{vTM2}")
e(f"v_xor_b32 v{vDX + 1}, 64, v{vDX}")
e(f"v_add_u32 v{vDX + 2}, {2 * 9216}, v{vDX}")
e(f"v_add_u32 v{vDX + 3}, {3 * 9216}, v{vDX + 1}")
e(f"v_add_u32 v{vDX + 1}, 9216, v{vDX + 1}")
wide_dma_addr(vDW, 3456, 2)
e(f"s_cmp_eq_u32 s{sCB}, 13")
e(f"s_cselect_b32 s{sT[0]}, 8, 0")
e(f"v_and_b32 v{vTMP}, s{sT[0]}, v{vI}")
e(f"v_lshl_add_u32 v{vDW}, v{vTMP}, 27, v{vDW}")
e(f"v_xor_b32 v{vTMP}, s{sT[0]}, v{vTMP}")
e(f"v_lshl_add_u32 v{vDW + 2}, v{vTMP}, 27, v{vDW + 2}")
e(f"v_add_u32 v{vDW + 1}, 12800, v{vDW}")
e(f"v_add_u32 v{vDW + 3}, {3 * 12800}, v{vDW + 2}")
e(f"v_add_u32 v{vDW + 2}, {2 * 12800}, v{vDW + 2}")
e(f"s_lshr_b32 s{sT[0]}, s{sW}, 1")
e(f"s_lshl1_add_u32 s{sGATE}, s{sCB}, s{sT[0]}")
e(f"s_lshl2_add_u32 s{sXB}, s{sRB}, s{sW}")
e(f"s_mul_i32 s{sXB}, s{sXB}, {32 * 1280}")
e(f"s_lshl_b32 s{sT[0]}, s{sST}, 7")
e(f"s_add_u32 s{sXB}, s{sXB}, s{sT[0]}")
e(f"s_lshl2_add_u32 s{sWB}, s{sST}, s{sW}")
e(f"s_mul_i32 s{sWB}, s{sWB}, {16 * 3456}")
e(f"s_lshl_b32 s{sT[0]}, s{sCB}, 8")
e(f"s_add_u32 s{sWB}, s{sWB}, s{sT[0]}")


def next_stage_ops():
    def a():
        e(f"s_add_u32 s{sST}, s{sST}, 1")
        e(f"s_cmp_eq_u32 s{sST}, 10")
        e(f"s_cselect_b32 s{sT[5]}, 9, -1")

    def b():
        e(f"s_mul_i32 s{sT[6]}, s{sT[5]}, 128")
        e(f"s_sub_u32 s{sXB}, s{sXB}, s{sT[6]}")

    def c():
        e(f"s_mul_i32 s{sT[6]}, s{sT[5]}, {64 * 3456}")
        e(f"s_sub_u32 s{sWB}, s{sWB}, s{sT[6]}")

    def d():
        e(f"s_cmp_eq_u32 s{sST}, 10")
        e(f"s_cselect_b32 s{sST}, 0, s{sST}")
    return [a, b, c, d]


def stage_dma_ops(buf, w=None, parts="xw", setm0=True):
    ops = []
    for part, base, va, srd, lo, dw in (("x", sXB, vDX, rX, 0, 32 * 1280), ("w", sWB, vDW, rW, 16384, 16 * 3456)):
        if part not in parts:
            continue
        for j in range(4):
            def op(j=j, base=base, va=va, srd=srd, lo=lo, dw=dw):
                so = base
                if w is None:
                    if j == 0 and setm0:
                        e(f"s_add_u32 m0, s{sLB}, {buf + lo}")
                else:
                    so = sT[2]
                    if j == 0:
                        e(f"s_mov_b32 m0, {buf + lo + w * 4096}")
                        e(f"s_sub_u32 s{so}, s{base}, {(3 - w) * dw}")
                return e.v(f"buffer_load_dwordx4 v{va + j}, {S(srd, 4)}, s{so} offen offset:{1024 * j} lds")
            ops.append(op)
    return ops


def g1_frag_addrs():
    e(f"s_and_b32 s{sT[0]}, s{sW}, 1")
    e(f"s_lshl_b32 s{sT[0]}, s{sT[0]}, 13")
    e(f"v_lshrrev_b32 v{vTMP}, 1, v{vI}")
    e(f"v_xor_b32 v{vTMP}, v{vTMP}, v{vG}")
    e(f"v_lshl_add_u32 v{vTM2}, v{vI}, 7, s{sT[0]}")
    e(f"v_lshl_add_u32 v{vXA}, v{vTMP}, 4, v{vTM2}")
    e(f"v_xor_b32 v{vXA + 1}, 64, v{vXA}")
    e(f"v_add_u32 v{vXA + 2}, 0x10000, v{vXA}")
    e(f"v_add_u32 v{vXA + 3}, 0x10000, v{vXA + 1}")
    tr_addr0(vTA)
    e(f"s_lshr_b32 s{sT[1]}, s{sW}, 1")
    e(f"s_lshl_b32 s{sT[1]}, s{sT[1]}, 7")
    e(f"v_xor_b32 v{vTA}, s{sT[1]}, v{vTA}")
    for i in range(1, 4):
        e(f"v_xor_b32 v{vTA + i}, {i << 5}, v{vTA}")
    for i in range(4):
        e(f"v_add_u32 v{vTA + 4 + i}, 0x10000, v{vTA + i}")


GWR = 136


def gate_issue():
    lab = e.label("Lng")
    e(f"s_cmp_lg_u32 s{sGATE}, 27")
    e(f"s_cbranch_scc1 {lab}")
    e.raw(f"global_load_dwordx4 {V(GWR, 4)}, v{vL16}, {S(pGW, 2)}")
    e(f"v_add_u32 v134, 1024, v{vL16}")
    e("v_min_u32 v134, 0x4f0, v134")
    e.raw(f"global_load_dwordx4 {V(GWR + 4, 4)}, v134, {S(pGW, 2)}")
    e(f"{lab}:")


def gate_store():
    lab = e.label("Lng")
    e(f"s_cmp_lg_u32 s{sGATE}, 27")
    e(f"s_cbranch_scc1 {lab}")
    e(f"v_add_u32 v{vTMP}, {L_GW}, v{vL16}")
    e(f"v_add_u32 v134, {L_GW}, v134")
    e.raw(f"ds_write_b128 v{vTMP}, {V(GWR, 4)}")
    e.raw(f"ds_write_b128 v134, {V(GWR + 4, 4)}")
    e(f"{lab}:")


e(f"s_cmp_eq_u32 s{sW}, 3")
e("s_cbranch_scc1 Lbeta")
st_ab = e.state()

e.wl()
first_stamp()
gate_issue()
PR = 128
tP = [e.v(f"global_load_dword v{PR + i}, v63, {S(p, 2)}{' nt' if OPT['nt'] & 2 else ''}") for i, p in enumerate((pARE, pAIM, pBRE, pBIM, pCRE, pCIM))]
e("s_barrier")
e(f"s_and_b32 s{sT[0]}, s{sCH}, 0xfffe")
e(f"s_lshl_b32 s{sT[0]}, s{sT[0]}, 1")
e.s(f"s_load_dword s{sLDT}, {S(pLDT, 2)}, s{sT[0]}")
e.s(f"s_load_dword s{sDSK}, {S(pDSK, 2)}, s{sT[0]}")
set_srds()
for op in stage_dma_ops(0, parts="w"):
    tW0 = op()
if OPT["tlb"]:
    tlb_touch()
e(f"s_mul_i32 s{sSSM}, s{sW}, {SSM_SZ}")
e(f"s_add_u32 s{sSSM}, s{sSSM}, {L_SSM}")
e(f"v_add_u32 v{vSTW}, s{sSSM}, v{vL16}")
e(f"v_lshl_add_u32 v{vST8}, v{vLANE}, 3, s{sSSM}")
e("v_mov_b32 v64, 0"); e("v_mov_b32 v65, 0"); e("v_mov_b32 v66, 0"); e("v_mov_b32 v67, 0")
for i in range(3):
    e.d(f"ds_write_b128 v{vSTW}, v[64:67] offset:{K_E + i * 1024}")
e.d(f"ds_write_b64 v{vST8}, v[64:65] offset:{K_E + 3072}")
e(f"v_mul_u32_u24 v{vTMP}, 544, v{vI}")
e(f"v_lshl_add_u32 v{vTMP}, v{vG}, 4, v{vTMP}")
e(f"v_add_u32 v{vSTR}, s{sSSM}, v{vTMP}")
g1_frag_addrs()
for op in next_stage_ops() + next_stage_ops():
    op()
e(f"v_lshlrev_b32 v68, 4, v{vI}")
e(f"v_lshrrev_b32 v{vTMP}, 1, v{vG}")
e(f"v_lshl_add_u32 v{vTMP}, v{vTMP}, 8, v68")
e(f"v_and_b32 v{vTM2}, 1, v{vG}")
e(f"v_lshl_add_u32 v{vTMP}, v{vTM2}, 3, v{vTMP}")
e(f"v_sub_u32 v{vA0}, s{sSSM}, v{vTMP}")
e(f"v_lshl_add_u32 v{vTMP}, v{vG}, 8, v68")
e(f"v_sub_u32 v{vA1}, s{sSSM}, v{vTMP}")
e(f"v_lshrrev_b32 v69, 1, v{vI}")
e(f"v_and_b32 v70, 1, v{vI}")
e(f"v_lshl_add_u32 v{vTMP}, v{vG}, 4, v69")
e(f"v_lshlrev_b32 v{vTMP}, 2, v{vTMP}")
e(f"v_lshl_add_u32 v{vTM2}, v70, 8, s{sSSM}")
e(f"v_sub_u32 v{vA2}, v{vTM2}, v{vTMP}")
e(f"v_lshl_add_u32 v{vTMP}, v{vG}, 5, v69")
e(f"v_lshlrev_b32 v{vTMP}, 2, v{vTMP}")
e(f"v_lshl_add_u32 v{vTM2}, v70, 1, s{sSSM}")
e(f"v_sub_u32 v{vA3}, v{vTM2}, v{vTMP}")
e(f"v_mov_b32 v{vA4}, s{sSSM}")
e(f"v_lshlrev_b32 v71, 2, v{vG}")
e(f"v_sub_u32 v{vTMP}, v71, v69")
e(f"v_lshl_add_u32 v{vTMP}, v{vTMP}, 2, s{sSSM}")
e(f"v_mul_u32_u24 v{vTE}, {K_O - K_E}, v70")
e(f"v_add_u32 v{vTMP}, {K_E + 28}, v{vTMP}")
e(f"v_add_u32 v{vTE}, v{vTE}, v{vTMP}")
e(f"v_add_u32 v{vTE2}, 512, v{vTE}")
e(f"v_sub_u32 v{vTMP}, v71, v{vI}")
e(f"v_lshl_add_u32 v{vTMP}, v{vTMP}, 2, s{sSSM}")
e(f"v_add_u32 v{vS}, {K_S2A + 60}, v{vTMP}")
e(f"v_lshl_add_u32 v{vTMP}, v{vI}, 5, s{sSSM}")
e(f"v_lshl_add_u32 v{vUA}, v{vG}, 4, v{vTMP}")
e(f"v_lshl_add_u32 v{vYW}, v{vG}, 3, v{vTMP}")
e(f"s_mov_b32 s{sC1}, 0x00010001")
e(f"s_mov_b32 s{sC2}, 0x3f80")
e(f"v_lshlrev_b32 v68, 3, v{vG}")
for bi, (lo, wd) in enumerate(((11, 3), (6, 5), (5, 7), (4, 9), (12, 2))):
    if bi == 4:
        e(f"s_mov_b32 s{sC2}, 0xffff")
    e(f"v_add_u32 v{vTMP}, {lo}, v{vI}")
    e(f"v_bfm_b32 v{vTMP}, {wd}, v{vTMP}")
    e(f"v_bfe_u32 v{vTMP}, v{vTMP}, v68, 8")
    e(f"v_lshl_or_b32 v{vTMP}, v{vTMP}, 15, v{vTMP}")
    for jj in range(4):
        if jj:
            e(f"v_lshrrev_b32 v{vTM2}, {2 * jj}, v{vTMP}")
        e(f"v_and_b32 v{vTM2}, s{sC1}, v{vTM2 if jj else vTMP}")
        e(f"v_mul_u32_u24 v{vBAND + 4 * bi + jj}, s{sC2}, v{vTM2}")
late_addrs(True)
stamp(19)
e.wl()
for sx in (sLDT, sDSK):
    e(f"s_lshl_b32 s{sT[0]}, s{sx}, 16")
    e(f"s_and_b32 s{sT[1]}, s{sx}, 0xffff0000")
    e(f"s_bitcmp1_b32 s{sCH}, 0")
    e(f"s_cselect_b32 s{sx}, s{sT[1]}, s{sT[0]}")
vDT = 64
e(f"v_mov_b32 v66, s{sLDT}")
e("v_mul_f32 v67, 0x3fb8aa3b, v66")
e("v_fmac_f32 v67, 0x32a5705f, v66")
e("v_exp_f32 v67, v67")
e("v_cvt_pk_bf16_f32 v67, v67, v67")
e(f"v_lshlrev_b32 v{vDT}, 16, v67")
e(f"v_mov_b32 v{vDT + 1}, v{vDT}")

pool = list(range(146, 224, 2)) + list(range(74, 128, 2))


def alloc():
    return pool.pop(0)


def free(*rs):
    pool.extend(rs)


def cmul2(z, q, conj=False):
    d = (alloc(), alloc())
    for s in range(2):
        e(f"v_pk_mul_f32 {V(d[s], 2)}, {V(z[s], 2)}, {V(q[s], 2)} op_sel:[0,0] op_sel_hi:[1,0]")
    for s in range(2):
        e(f"v_pk_fma_f32 {V(d[s], 2)}, {V(z[s], 2)}, {V(q[s], 2)}, {V(d[s], 2)} op_sel:[1,1,0] op_sel_hi:[0,1,1] {'neg_hi' if conj else 'neg_lo'}:[1,0,0]")
    return d


cvt_i = [0]


def put_row(z, row):
    c = (66, 68, 70, 72)[cvt_i[0] % 4]
    cvt_i[0] += 1
    if z is None:
        e(f"v_mov_b32 v{c}, 0x3f80")
        e(f"v_mov_b32 v{c + 1}, 0x3f80")
    else:
        e(f"v_cvt_pk_bf16_f32 v{c}, v{z[0]}, v{z[0] + 1}")
        e(f"v_cvt_pk_bf16_f32 v{c + 1}, v{z[1]}, v{z[1] + 1}")
    e.d(f"ds_write_b64 v{vST8}, {V(c, 2)} offset:{row * 544}")


def read_tile(t):
    for k in range(8):
        e.d(f"ds_read_b128 {A(32 * t + 4 * k, 4)}, v{vSTR} offset:{64 * k}")


e.wv(tP[-1])
stamp(3)
gate_store()
AW, Bc, Cc = [], [], []
for s in range(2):
    aw, b, c = alloc(), alloc(), alloc()
    for dst, src in ((aw, PR), (aw + 1, PR + 1), (b, PR + 2), (b + 1, PR + 3), (c, PR + 4), (c + 1, PR + 5)):
        e(f"v_lshlrev_b32 v{dst}, 16, v{src}" if s == 0 else f"v_and_b32 v{dst}, 0xffff0000, v{src}")
    e(f"v_pk_mul_f32 {V(aw, 2)}, {V(aw, 2)}, {V(vDT, 2)}")
    e(f"v_mul_f32 v{aw}, 0x3fb8aa3b, v{aw}")
    e(f"v_mul_f32 v{aw + 1}, 0.15915494, v{aw + 1}")
    AW.append(aw); Bc.append(b); Cc.append(c)


def direct(m):
    out, tmp = [], []
    for s in range(2):
        d, t = alloc(), alloc()
        if m == 1:
            e(f"v_exp_f32 v{t}, v{AW[s]}")
            e(f"v_fract_f32 v{t + 1}, v{AW[s] + 1}")
        else:
            lit = {8: "0x41000000", 128: "0x43000000"}[m]
            e(f"v_mul_f32 v{t}, {lit}, v{AW[s]}")
            e(f"v_mul_f32 v{t + 1}, {lit}, v{AW[s] + 1}")
            e(f"v_exp_f32 v{t}, v{t}")
            e(f"v_fract_f32 v{t + 1}, v{t + 1}")
        out.append(d); tmp.append(t)
    for s in range(2):
        e(f"v_cos_f32 v{out[s]}, v{tmp[s] + 1}")
        e(f"v_sin_f32 v{out[s] + 1}, v{tmp[s] + 1}")
    for s in range(2):
        e(f"v_pk_mul_f32 {V(out[s], 2)}, {V(out[s], 2)}, {V(tmp[s], 2)} op_sel:[0,0] op_sel_hi:[1,0]")
    free(*tmp)
    return tuple(out)


q8 = direct(8)
X = cmul2(Cc, Bc)
for s in range(2):
    e(f"v_pk_mul_f32 {V(X[s], 2)}, {V(X[s], 2)}, {V(vDT, 2)} neg_hi:[0,1]")
E = {}
for rho in range(16):
    if rho < 15:
        Xn = cmul2(X, q8, conj=True)
    put_row(X, rho)
    free(*X)
    X = Xn
read_tile(0)
E[1] = direct(1)
q128 = direct(128)
stamp(20)
E[8] = q8
for l in range(1, 9):
    if l < 7:
        E[l + 1] = cmul2(E[l], E[1])
    put_row(E[l], l - 1)
for b in range(8):
    E[129 + b] = cmul2(E[1 + b], q128)
    put_row(E[129 + b], 8 + b)
    if b % 2 == 0:
        free(*E[129 + b])
        free(*E[1 + b])
read_tile(1)
q256 = cmul2(q128, q128)
q512 = cmul2(q256, q256)
q1024 = cmul2(q512, q512)
stamp(21)
for c in range(2):
    for b in range(4):
        l = 258 + 128 * c + 2 * b
        E[l] = cmul2(E[l - 256], q256)
        put_row(E[l], 4 * c + b)
for c in range(4):
    for b in range(2):
        l = 516 + 128 * c + 4 * b
        E[l] = cmul2(E[l - 512], q512)
        put_row(E[l], 8 + 2 * c + b)
        if b == 0:
            free(*E[l])
read_tile(2)
stamp(22)
for c in range(8):
    l = 1032 + 128 * c
    z = cmul2(E[l - 1024], q1024)
    put_row(z, c)
    free(*z)
put_row(None, 8)
read_tile(3)
e("v_mov_b32 v66, 0"); e("v_mov_b32 v67, 0")
e.d(f"ds_write_b64 v{vST8}, v[66:67]")
stamp(4)
e.wv(tW0)
e("s_branch Lg1")

e.restore(st_ab)
e("Lbeta:")
e.wl()
first_stamp()
set_srds()
gate_issue()
e("s_barrier")
st_b = e.state()


def beta_head(ticks):
    for w in range(4):
        for op in stage_dma_ops(0, w, "x"):
            tx = op()
    for op in stage_dma_ops(0, parts="w"):
        op()
    e.bg.extend(next_stage_ops())
    for w in range(4):
        e.bg.extend(stage_dma_ops(RING, w))
    e.bg.extend(next_stage_ops())
    for w in range(4):
        e.bg.extend(stage_dma_ops(2 * RING, w, "x"))
    e.tick(ticks)
    g1_frag_addrs()
    late_addrs(True)
    return tx


def dummies():
    e("s_mov_b64 exec, 1")
    for i in range(16):
        e.v(f"buffer_store_dword v{vL16}, off, {S(rST, 4)}, 0")
    e("s_mov_b64 exec, -1")


e(f"s_cmp_lt_u32 s{sCB}, 10")
e("s_cbranch_scc1 Lb_ut")
e(f"s_cmp_lg_u32 s{sCB}, 13")
e("s_cbranch_scc1 Lb_none")
e(f"s_cmp_ge_u32 s{sRB}, 12")
e("s_cbranch_scc1 Lb_none")
e(f"s_add_u32 s{sU}, s{sRB}, 128")
tk = w2_unit_issue(vSTW, None, L_UNIT)
beta_head(0)
tr_addr0(vST8)
e(f"v_add_u32 v{vST8}, {L_UNIT}, v{vST8}")
e.wv(tk)
gate_store()
tk_tag = e.v(tag_load)
tS = w2_unit_out(vST8, 64, (0, 1))
e.flush_bg()
get_tag(tk_tag)
e.wv(tS)
store_flag(rWS, sP0F)
dummies()
e("s_branch Lb_done")
e.restore(st_b)
e("Lb_none:")
tx = beta_head(OPT["btick"])
e.wv(tx)
gate_store()
e.flush_bg()
dummies()
e("s_branch Lb_done")
e.restore(st_b)
e("Lb_ut:")
tx = beta_head(OPT["btick"])
vU0, vSW, vSR, vUS = 48, 52, 53, 54
e(f"v_lshrrev_b32 v{vTMP}, 2, v{vI}")
e(f"v_lshl_add_u32 v{vTM2}, v{vG}, 3, v{vTMP}")
e(f"v_lshlrev_b32 v{vU0}, 7, v{vTM2}")
e(f"v_lshrrev_b32 v{vTMP}, 3, v{vI}")
e(f"v_bfe_u32 v{vTM2}, v{vI}, 1, 1")
e(f"v_xor_b32 v{vTMP}, v{vTMP}, v{vTM2}")
e(f"v_and_b32 v{vTM2}, 1, v{vG}")
e(f"v_lshl_or_b32 v{vTMP}, v{vTM2}, 2, v{vTMP}")
e(f"v_lshl_add_u32 v{vU0}, v{vTMP}, 4, v{vU0}")
e(f"v_and_b32 v{vTM2}, 1, v{vI}")
e(f"v_lshl_add_u32 v{vU0}, v{vTM2}, 3, v{vU0}")
for k in range(1, 4):
    e(f"v_xor_b32 v{vU0 + k}, {k << 5}, v{vU0}")
e(f"v_mul_u32_u24 v{vTMP}, 272, v{vI}")
e(f"v_lshl_add_u32 v{vTMP}, v{vG}, 4, v{vTMP}")
e(f"v_add_u32 v{vSW}, {L_SCR}, v{vTMP}")
e(f"v_mul_u32_u24 v{vTMP}, 272, v{vG}")
e(f"v_lshl_add_u32 v{vTMP}, v{vI}, 4, v{vTMP}")
e(f"v_add_u32 v{vSR}, {L_SCR}, v{vTMP}")
e(f"v_mul_u32_u24 v{vTMP}, {UTP}, v{vG}")
e(f"v_lshl_add_u32 v{vUS}, v{vI}, 4, v{vTMP}")
e(f"s_mul_i32 s{sC1}, s{sCS}, {64 * UTP}")
e(f"s_lshl_b32 s{sT[0]}, s{sRB}, 8")
e(f"s_add_u32 s{sC1}, s{sC1}, s{sT[0]}")
e(f"s_add_u32 s{sC1}, s{sC1}, {WS_UT}")
e(f"s_lshl4_add_u32 s{sP0F}, s{sCS}, s{sRB}")
e(f"s_lshl_b32 s{sP0F}, s{sP0F}, 6")
e(f"s_add_u32 s{sP0F}, s{sP0F}, {WS_FUT}")
e(f"s_mov_b32 s{rST + 2}, {WS_SIZE}")
e.wv(tx)
stamp(3)
tks = {}
for dt in range(4):
    for tq in range(4):
        for hh in range(2):
            tks[dt] = e.d(f"ds_read_b64_tr_b16 {V(64 + 16 * dt + 4 * tq + 2 * hh, 2)}, v{vU0 + (dt ^ hh)} offset:{hh * 512 + tq * 4096}")
    e.tick(4)
trd = {}
for dt in range(4):
    e.wl(tks[dt])
    for tq in range(4):
        e.d(f"ds_write_b128 v{vSW}, {V(64 + 16 * dt + 4 * tq, 4)} offset:{(dt & 1) * 4352 + tq * 64}")
        e.tick(1)
    for j in range(4):
        trd[dt, j] = e.d(f"ds_read_b128 {V(HR + 16 * dt + 4 * j, 4)}, v{vSR} offset:{(dt & 1) * 4352 + j * 1088}")
e.flush_bg()
for dt in range(4):
    for j in range(4):
        e(f"s_add_u32 s{sT[3]}, s{sC1}, {(16 * dt + 4 * j) * UTP}")
        e.wl(trd[dt, j])
        e.v(f"buffer_store_dwordx4 {V(HR + 16 * dt + 4 * j, 4)}, v{vUS}, {S(rWS, 4)}, s{sT[3]} offen {SC}")
e("Lb_done:")
e.join()
e.raw("s_waitcnt vmcnt(63)")
stamp(4)

e("Lg1:")
e.join()
ACC = 64
FA, FB = (192, 224), (208, 240)
D0, D1, D2 = 160, 164, 168
tk_tag = e.v(tag_load)
e("s_barrier")
stamp(5)
e(f"s_cmp_eq_u32 s{sGATE}, 27")
e("s_cbranch_scc1 Lg1gate")
st_g1 = e.state()


def kmf(t, k):
    D = (D0, D1, D2)[t - 1]
    return lambda: e(f"{MF} {V(D, 4)}, {A(32 * t + 4 * k, 4)}, {A(4 * k, 4)}, {'0' if k == 0 else V(D, 4)}")


def g1(gate):
    rt = {}
    w2cur[0] = None

    def reads(n):
        s, kk = divmod(n, 2)
        b = s % 3
        st, off = (1, 0) if b == 2 else (0, b * RING)
        p = n & 1

        def ra(i, hh):
            rt[n, "a", i] = e.d(f"ds_read_b64_tr_b16 {A(FA[p] + 4 * i + 2 * hh, 2)}, v{vTA + 4 * st + i} offset:{off + 16384 + kk * 8192 + hh * 1024}")

        def rb(i):
            rt[n, "b", i] = e.d(f"ds_read_b128 {A(FB[p] + 4 * i, 4)}, v{vXA + 2 * st + kk} offset:{off + i * 2048}")

        def rg():
            if kk == 0:
                e(f"s_lshl_b32 s{sT[3]}, s{sCS}, 7")
                e(f"s_add_u32 s{sT[3]}, s{sT[3]}, {L_GW}")
                e(f"v_lshl_add_u32 v{vGG}, v{vG}, 4, s{sT[3]}")
                e(f"s_add_u32 s{sCS}, s{sCS}, 1")
                e(f"s_cmp_eq_u32 s{sCS}, 10")
                e(f"s_cselect_b32 s{sCS}, 0, s{sCS}")
            rt[n, "a", 0] = e.d(f"ds_read_b128 {A(FA[p], 4)}, v{vGG} offset:{64 * kk}")
        if gate:
            return [rg] + [lambda i=i: rb(i) for i in range(4)]
        return [lambda: ra(0, 0), lambda: rb(0), lambda: ra(0, 1), lambda: rb(1), lambda: ra(1, 0), lambda: rb(2), lambda: ra(1, 1), lambda: rb(3),
                lambda: ra(2, 0), lambda: ra(2, 1), lambda: ra(3, 0), lambda: ra(3, 1)]

    stage_tk = {}
    at = {}

    def AT(g, fn):
        at.setdefault(g, []).append(fn)

    def plan_stage(s, g0, step, parts="xw"):
        buf = (s % 3) * RING
        ops = stage_dma_ops(buf, parts=parts, setm0=False)

        def last(op=ops[-1]):
            stage_tk[s] = op()
        ops = ops[:-1] + [last]
        i0 = 8 - len(ops)
        if i0 == 0:
            AT(g0 - 1, lambda: e(f"s_add_u32 m0, s{sLB}, {buf}"))
        AT(g0 + 4 * step - 1, lambda: e(f"s_add_u32 m0, s{sLB}, {buf + 16384}"))
        for i, op in enumerate(ops):
            AT(g0 + step * (i + i0), op)
        if s < 9:
            a, b, c, d = next_stage_ops()
            AT(g0 + 5 * step + 2, a)
            AT(g0 + 5 * step + 3, b)
            AT(g0 + 6 * step + 1, d)
            AT(g0 + 7 * step + 1, c)

    for op in reads(0):
        op()
    e.smem = False
    plan_stage(2, -14, 4, "w")
    for s in range(7):
        plan_stage(s + 3, 16 * (2 * s + 1) + 6, 4)
    CHK = OPT["chk"]
    AT(16 * CHK - 24, lambda: misc.__setitem__("p0", e.v(fl_load(vFP))))

    def hb():
        e(f"s_and_b32 s{sT[0]}, s{sW}, 1")
        e(f"s_lshl1_add_u32 s{sT[0]}, s{sRB}, s{sT[0]}")
        e(f"s_lshl_b32 s{sFL}, s{sT[0]}, 5")
    AT(268, hb)
    AT(269, lambda: (e(f"s_add_u32 s{sFL}, s{sFL}, s{sGATE}"), e(f"s_lshl_b32 s{sFL}, s{sFL}, 6")))
    AT(270, lambda: (e(f"s_add_u32 s{sFL}, s{sFL}, {WS_FH}"), e(f"s_mul_i32 s{sC1}, s{sT[0]}, {4 * KS}")))
    AT(271, lambda: (e(f"s_lshl_b32 s{sC2}, s{sGATE}, 11"), e(f"s_add_u32 s{sC1}, s{sC1}, s{sC2}")))
    AT(272, lambda: (e(f"s_add_u32 s{sC1}, s{sC1}, {WS_HF}"), e(f"s_lshl_b32 s{sC2}, s{sT[0]}, 8")))
    AT(16 * CHK - 2, lambda: (e(f"s_mul_i32 s{sT[1]}, s{sCH}, {UTP}"), e(f"s_add_u32 s{sT[1]}, s{sT[1]}, {WS_UT}")))
    for n in range(20):
        s, kk = divmod(n, 2)
        p = n & 1
        if n == CHK:
            spin_check(misc["p0"], vFP)
            stamp(14)
            e.bg += [lambda j=j: misc.__setitem__("ut", e.v(f"buffer_load_dwordx4 {V(YST + 4 * j, 4)}, v{vL16}, {S(rWS, 4)}, s{sT[1]} offen offset:{1024 * j} sc1")) for j in range(4)]
            e.bg += [lambda k=k: w2_load(k) for k in W2ORD[:OPT["nw2"]]]
        rd = reads(n + 1) if n < 19 else []
        for k in range(16):
            i, j = divmod(k, 4)
            if n == 19:
                i = (i + 2) % 4
            if kk == 1 and k == 4:
                e.wl()
                stamp(20 + 2 * s, grp=2)
                if s == 0:
                    e.raw("s_waitcnt vmcnt(37)")
                elif s < 9:
                    e.wv(stage_tk[s + 1])
                e("s_barrier")
                stamp(21 + 2 * s, grp=2)
                if s == 1:
                    get_tag(tk_tag)
                    store_flag(rST, sP0F)
            if i == 0 or not gate:
                if k == 0:
                    e.wl(rt[n, "b", 3] if n < 19 or gate else rt[n, "a", 2])
                elif k == 8:
                    e.wl(rt[n, "a", 0 if gate else 3])
                a = ACC + 16 * i + 4 * j
                e(f"{MF} {V(a, 4)}, {A(FA[p] + 4 * i, 4)}, {A(FB[p] + 4 * j, 4)}, {'0' if n == 0 else V(a, 4)}")
            if (kk == 0 or k >= 4) and rd:
                rd.pop(0)()
            for fn in at.pop(16 * n + k, []):
                fn()
            if (16 * n + k) % OPT["gper"] == 3 and 16 * n + k > 242:
                e.tick()
        assert not rd
    assert not at, at
    e.flush_bg()
    stamp(6)
    km = [kmf(t, k) for k in range(8) for t in (1, 2, 3)]
    if gate:
        for fn in km:
            fn()
        for j in range(1, 4):
            e(f"v_cmp_eq_u32 vcc, {j}, v{vG}")
            e(f"v_cndmask_b32 v{ACC}, v{ACC}, v{ACC + 4 * j}, vcc")
        e(f"v_mul_f32 v{ACC}, 0xbfb8aa3b, v{ACC}")
        e(f"v_exp_f32 v{ACC}, v{ACC}")
        e(f"v_add_f32 v{ACC}, 1.0, v{ACC}")
        e(f"v_rcp_f32 v{ACC}, v{ACC}")
        e(f"v_lshlrev_b32 v{vTMP}, 2, v{vLANE}")
        e(f"s_add_u32 s{sC2}, s{sC2}, {WS_G}")
        e.raw(f"buffer_store_dword v{ACC}, v{vTMP}, {S(rWS, 4)}, s{sC2} offen {SC}")
        for q in range(4):
            e(f"v_mov_b32 v{ACC + 4 + q}, 0")
    for pr in (1, 0):
        for j in range(4):
            o = ACC + 32 * pr + 4 * j
            a1 = o + 16
            if not gate:
                km.pop(0)()
                e(f"v_cvt_pk_bf16_f32 v{o}, v{o}, v{o + 1}")
                e(f"v_cvt_pk_bf16_f32 v{o + 1}, v{o + 2}, v{o + 3}")
                e(f"v_cvt_pk_bf16_f32 v{o + 2}, v{a1}, v{a1 + 1}")
                km.pop(0)()
                e(f"v_cvt_pk_bf16_f32 v{o + 3}, v{a1 + 2}, v{a1 + 3}")
                for q in range(4):
                    e(f"v_pk_max_i16 v{o + q}, v{o + q}, 0")
                    if q == 1:
                        km.pop(0)()
            e(f"s_add_u32 s{sT[2]}, s{sC1}, {KS * j}")
            e.v(f"buffer_store_dwordx4 {V(ACC + 4 if gate else o, 4)}, v{vL16}, {S(rWS, 4)}, s{sT[2]} offen offset:{1024 * pr} {SC if OPT['hsc'] else ''}")


g1(False)
e("Lpost:")
tH = e.vm - 1
tUTl = misc["ut"]
vm_post = e.vm
w2_post = w2cur[0]
e.lg += 1000
e.lg_done = 0
stamp(7)
e(f"s_cmp_eq_u32 s{sW}, 3")
e("s_cbranch_scc1 Lbeta2")
st_post = e.state()

e.bg += [lambda k=k: w2_load(k) for k in W2ORD[OPT["nw2"]:]]
e.smem = False
X0, Y, Z = 172, 176, 184
LO, HI = 0xffffffff, 0xffffffff00000000


def grp(mask, *ins_):
    def f():
        if mask != -1:
            setexec(mask)
        for x in ins_:
            e.d(x)
        if mask != -1:
            setexec(-1)
    return f


e.wv(tUTl)
e.d(f"ds_write_b128 v{vSTW}, {V(YST, 4)} offset:512")
e(f"v_cvt_pk_bf16_f32 v{X0}, v{D0 + 3}, v{D0 + 2}")
e(f"v_cvt_pk_bf16_f32 v{X0 + 1}, v{D0 + 1}, v{D0}")
e(f"v_cvt_pk_bf16_f32 v{X0 + 2}, v{D0 + 2}, v{D0 + 1}")
e.d(f"ds_write_b64 v{vA0}, {V(X0, 2)} offset:{K_E + 2 * (544 - 4)}")
e(f"v_cvt_pk_bf16_f32 v{Y}, v{D1 + 3}, v{D1 + 3}")
e.d(f"ds_write_b32 v{vA0}, v{X0 + 2} offset:{K_O + 2 * (545 - 3)}")
e(f"v_cvt_pk_bf16_f32 v{Y + 1}, v{D1 + 3}, v{D1 + 2}")
e.d(f"ds_write_b16_d16_hi v{vA0}, v{X0 + 1} offset:{K_O + 2 * (545 - 1)}")
e(f"v_cvt_pk_bf16_f32 v{Y + 2}, v{D1 + 1}, v{D1 + 1}")
e.d(f"ds_write_b16 v{vA0}, v{X0} offset:{K_O + 2 * (545 - 4)}")
e(f"v_cvt_pk_bf16_f32 v{Y + 3}, v{D1 + 1}, v{D1}")
e(f"v_cvt_pk_bf16_f32 v{Y + 4}, v{D1 + 2}, v{D1 + 1}")
grp(LO, f"ds_write_b128 v{vA1}, {V(Y, 4)} offset:{K_O + 2 * (545 - 265)}",
    f"ds_write_b16_d16_hi v{vA1}, v{Y + 3} offset:{K_E + 2 * (544 - 258)}", f"ds_write_b32 v{vA1}, v{Y + 2} offset:{K_E + 2 * (544 - 260)}",
    f"ds_write_b32 v{vA1}, v{Y + 4} offset:{K_E + 2 * (544 - 262)}", f"ds_write_b32 v{vA1}, v{Y} offset:{K_E + 2 * (544 - 264)}",
    f"ds_write_b16 v{vA1}, v{Y} offset:{K_E + 2 * (544 - 265)}")()

CA, UF, WO = 64, 96, 120
TF, T2, T3 = 0, 68, 92


def rd2(dst, addr, o):
    e.d(f"ds_read2_b32 {A(dst, 2)}, v{addr} offset0:{o} offset1:{o + 1}")
    return e.d(f"ds_read2_b32 {A(dst + 2, 2)}, v{addr} offset0:{o + 2} offset1:{o + 3}")


tT, tU, tF = {}, {}, {}


def t_read(q):
    o = 257 - 16 * q
    tT[q] = rd2(TF + 4 * q, vTE, o) if o + 3 <= 255 else rd2(TF + 4 * q, vTE2, o - 128)


def far_reg(z, dl):
    return T2 + 4 * (3 * z + dl - 2) if z < 2 else T3 + 4 * (dl - 4)


def far_read(z, dl):
    tF[z, dl] = rd2(far_reg(z, dl), vS, 64 * z + 64 - 16 * dl if z < 2 else 128 + 112 - 16 * dl)


useq = []
for i in range(-7, 57):
    useq.append(("U", i))
    if i >= 0 and i % 8 == 0 and i // 8 <= 5:
        useq.append(("P", i // 8))
NU = 6


def u_read(k):
    kind, i = useq[k]
    off = 480 + 64 * i if kind == "U" else 2 * (256 + 256 * i - 24)
    tU[k] = e.d(f"ds_read_b128 {V(UF + 4 * (k % NU), 4)}, v{vUA} offset:{off}")


for q in (7, 15):
    t_read(q)
u_read(0)
u_read(1)
for q in (6, 14, 5, 13):
    t_read(q)
for k in range(2, NU - 1):
    u_read(k)
e(f"v_cvt_pk_bf16_f32 v{Y + 5}, v{D1}, v{D1 + 1}")
e(f"v_cvt_pk_bf16_f32 v{Y + 6}, v{D1 + 2}, v{D1 + 3}")
e(f"v_readlane_b32 s{sC2}, v{Y}, 63")
e(f"v_cvt_pk_bf16_f32 v{Z}, v{D2}, v{D2 + 1}")
e(f"v_cvt_pk_bf16_f32 v{Z + 1}, v{D2 + 2}, v{D2 + 3}")
e(f"v_add_f32 v{Z + 2}, s{sDSK}, v{D2}")
e(f"v_cvt_pk_bf16_f32 v{Z + 2}, v{Z + 2}, v{Z + 2}")
for jj in range(4):
    e(f"v_and_b32 v{vBAND + 16 + jj}, s{sC2}, v{vBAND + 16 + jj}")
stamp(16)
side = [lambda q=q: t_read(q) for q in (4, 12, 3, 11, 2, 10, 1, 9)]
side += [grp(1 << 32, f"ds_write_b16 v{vA4}, v{Z + 2} offset:{K_E + 2 * 544}", f"ds_write_b16 v{vA4}, v{Z + 2} offset:{K_O + 2 * 545}"),
         grp(1 << 63, f"ds_write_b16 v{vA4}, v{X0} offset:{K_E + 2 * (544 - 257)}", f"ds_write_b16 v{vA4}, v{X0} offset:{K_O + 2 * (545 - 257)}"),
         grp(1 << 31, f"ds_write_b16 v{vA4}, v{Y} offset:{K_E + 2 * (544 - 514)}", f"ds_write_b16 v{vA4}, v{Y} offset:{K_O + 2 * (545 - 514)}"),
         lambda: (t_read(0), t_read(8), t_read(16)), lambda: None, lambda: None,
         grp(HI, f"ds_write_b32 v{vA2}, v{Y + 5} offset:{K_S2A + 4 * 79}", f"ds_write_b32 v{vA2}, v{Y + 6} offset:{K_S2A + 4 * (79 - 8)}"),
         grp(-1, f"ds_write_b128 v{vSTW}, {V(YST + 4, 4)} offset:{512 + 1024}")]
side += [lambda z=z, dl=dl: far_read(z, dl) for z in range(2) for dl in (2, 3, 4)]
side += [grp(LO, f"ds_write_b16 v{vA3}, v{Z} offset:{K_S3 + 4 * (127 - 64)}", f"ds_write_b16_d16_hi v{vA3}, v{Z} offset:{K_S3 + 4 * (127 - 72)}"),
         grp(LO, f"ds_write_b16 v{vA3}, v{Z + 1} offset:{K_S3 + 4 * (127 - 80)}", f"ds_write_b16_d16_hi v{vA3}, v{Z + 1} offset:{K_S3 + 4 * (127 - 88)}")]
side += [lambda dl=dl: far_read(2, dl) for dl in (4, 5, 6, 7)]
side += [lambda: None] * 8 + [grp(-1, f"ds_write_b128 v{vSTW}, {V(YST + 8, 4)} offset:{512 + 2048}")]
side += [lambda: None] * 8 + [grp(-1, f"ds_write_b128 v{vSTW}, {V(YST + 12, 4)} offset:{512 + 3072}")]

touched = set()
nmf = [0]
later = []


def mfma(acc, a, b, key=None):
    first = key is not None and key not in touched
    if key is not None:
        touched.add(key)
    c = "0" if (first or key is None) else V(acc, 4)
    e(f"{MF} {V(acc, 4)}, {a}, {b}, {c}")
    nmf[0] += 1
    if side:
        side.pop(0)()
    if nmf[0] % OPT["cper"] == 0 and nmf[0] >= OPT["cstart"]:
        e.tick()
    if nmf[0] % 20 == 0:
        stamp(20 + nmf[0] // 20, grp=3)
    if nmf[0] == OPT["hflag_at"]:
        e.wv(tH)
        store_flag(rWS, sFL)
        stamp(19, grp=3)
    if nmf[0] == OPT["hchk_at"]:
        assert not e.bg
        misc["hf"] = e.v(fl_load(vFH))
    if nmf[0] == OPT["hchk_at"] + OPT["hlag"]:
        e.wv(misc["hf"])
        e(f"v_cmp_ne_u64 vcc, {S(sTAG, 2)}, {V(vFL, 2)}")
        e(f"s_cmp_eq_u64 vcc, 0")
        e(f"s_cselect_b32 s{sP0F}, 1, 0")
    k0 = nmf[0] - (OPT["hchk_at"] + OPT["hlag"])
    if k0 >= 1 and k0 % 2 == 1 and k0 // 2 < OPT["npre"]:
        lab = e.label("Lnp")
        e(f"s_cbranch_vccnz {lab}")
        sv = e.state()
        h_load(k0 // 2)
        e.restore(sv)
        e(f"{lab}:")
        misc["pre"] = k0 // 2 + 1
    if later and later[0][0] <= nmf[0] and later[0][2] == "v":
        later.pop(0)[1]()
        if nmf[0] % 2 and later and later[0][0] <= nmf[0] and later[0][2] == "v":
            later.pop(0)[1]()


def run_later_mfma():
    k = 0
    while later and later[0][0] <= nmf[0] and later[0][2] == "m" and k < 4:
        later.pop(0)[1]()
        k += 1


def finish_tile(a):
    def f():
        r = CA + 4 * a
        e(f"v_cvt_pk_bf16_f32 v{r}, v{r}, v{r + 1}")
        e(f"v_cvt_pk_bf16_f32 v{r + 1}, v{r + 2}, v{r + 3}")
        e.d(f"ds_write_b64 v{vYW}, {V(r, 2)} offset:{4608 + 512 * a}")
    return f


for k, (kind, i) in enumerate(useq):
    if k + NU - 1 < len(useq):
        u_read(k + NU - 1)
    e.wl(tU[min(k | 1, len(useq) - 1)])
    u = V(UF + 4 * (k % NU), 4)
    if kind == "U":
        for a in range(8):
            q = 8 * a - i
            if 0 <= q <= 16:
                e.wl(tT[q])
                mfma(CA + 4 * a, A(TF + 4 * q, 4), u, key=a)
        if i >= 0 and i % 8 == 0:
            C = i // 8
            if C <= 3:
                mfma(CA + 4 * (C + 4), V(vBAND + 16, 4), u, key=C + 4)
            if C <= 5:
                assert not later, "window regs still in use"
                mfma(WO, u, V(vBAND, 4))
                mfma(WO + 4, u, V(vBAND + 4, 4))
                if C <= 3:
                    mfma(WO + 16, u, V(vBAND + 8, 4))
            else:
                later.append((nmf[0] + 3, finish_tile(C), "v"))
    else:
        C = i
        mfma(WO + 8, u, V(vBAND, 4))
        mfma(WO + 12, u, V(vBAND + 4, 4))
        if C <= 3:
            mfma(WO + 20, u, V(vBAND + 12, 4))
        t0 = nmf[0] + 3
        later.append((nmf[0], finish_tile(C), "v"))
        for z in range(3 if C <= 3 else 2):
            for r in range(4):
                later.append((t0 - (2 if z == 0 else 0), lambda z=z, r=r: e(f"v_cvt_pk_bf16_f32 v{WO + 8 * z + r}, v{WO + 8 * z + r}, v{WO + 8 * z + 4 + r}"), "v"))
            for dl in ((2, 3, 4) if z < 2 else (4, 5, 6, 7)):
                if C + dl <= 7:
                    def far(z=z, dl=dl, C=C):
                        e.wl(tF[(z, dl)])
                        mfma(CA + 4 * (C + dl), V(WO + 8 * z, 4), A(far_reg(z, dl), 4), key=C + dl)
                    later.append((t0, far, "m"))
    run_later_mfma()
    if kind == "U" and i == 52:
        e(f"s_mov_b32 s{rST + 2}, s{sYOK}")
        e(f"s_mul_i32 s{sC1}, s{sCH}, {YTP}")
        e(f"s_add_u32 s{sC1}, s{sC1}, {WS_YT}")
        tY = [e.d(f"ds_read_b128 {V(YST + 4 * j, 4)}, v{vSTW} offset:{4608 + 1024 * j}") for j in range(3)]
while later:
    later.pop(0)[1]()
print("conv mfma:", nmf[0], "pre", misc["pre"], file=sys.stderr)
assert misc["pre"] == OPT["npre"] and not side
tY.append(e.d(f"ds_read_b128 {V(YST + 12, 4)}, v{vSTW} offset:{4608 + 3072}"))
e(f"s_lshl_b32 s{sFL}, s{sCH}, 6")
e(f"s_add_u32 s{sFL}, s{sFL}, {WS_FY}")
for j in range(4):
    e.wl(tY[j])
    e.v(f"buffer_store_dwordx4 {V(YST + 4 * j, 4)}, v{vL16}, {S(rST, 4)}, s{sC1} offen offset:{1024 * j} {SC}")
stamp(8)
e(f"s_cmp_lg_u32 s{sP0F}, 0")
e("s_cbranch_scc1 Lg2b")
spin_check(misc["hf"], vFH)
e("s_branch Lg2")

e.restore(st_post)
w2cur[0] = w2_post
e("Lbeta2:")
for i, k in enumerate(W2ORD[OPT["nw2"]:]):
    w2_load(k)
    if i == OPT["bout"]:
        e.wv(tH)
        store_flag(rWS, sFL)
e(f"s_mov_b32 s{rST + 2}, 0")
tk = e.v(fl_load(vFH))
stamp(8)
spin_check(tk, vFH, "lsleep")
e("s_branch Lg2")

e.restore(st_g1)
e("Lg1gate:")
g1(True)
assert e.vm == vm_post and misc["ut"] == tUTl
e("s_branch Lpost")

e.restore(st_entry)
e("Lfree:")
e(f"s_lshl2_add_u32 s{sT[0]}, s{sXCD}, s{sSLOT}")
e(f"s_lshl_b32 s{sU}, s{sW}, 5")
e(f"s_add_u32 s{sU}, s{sU}, s{sT[0]}")
e(f"s_lshl_b32 s{sLB}, s{sW}, 14")
e.wl()
first_stamp()
e(f"s_cmp_lg_u32 s{sU}, 96")
e("s_cbranch_scc1 Lnononce")
e.raw(f"s_load_dwordx2 {S(sTAG, 2)}, {S(pWS, 2)}, 0")
e.raw("s_waitcnt lgkmcnt(0)")
e(f"s_mul_i32 s{sTAG}, s{sTAG}, 0x9e3779b1")
e(f"s_add_u32 s{sTAG}, s{sTAG}, 0x7f4a7c15")
e(f"s_mul_i32 s{sTAG + 1}, s{sTAG + 1}, 0x85ebca6b")
e(f"s_add_u32 s{sTAG + 1}, s{sTAG + 1}, s{sTAG}")
e(f"s_or_b32 s{sTAG + 1}, s{sTAG + 1}, 1")
e(f"v_mov_b32 v64, s{sTAG}")
e(f"v_mov_b32 v65, s{sTAG + 1}")
e("s_mov_b64 exec, 1")
e.raw(f"global_store_dwordx2 v{vZ}, v[64:65], {S(pDBG, 2)} {SC}")
e.raw(f"global_store_dwordx2 v{vZ}, v[64:65], {S(pWS, 2)} {SC}")
e("s_mov_b64 exec, -1")
e("Lnononce:")
set_srds()
tk = w2_unit_issue(vSTW, sLB, 0)
tr_addr0(vST8)
e(f"v_add_u32 v{vST8}, s{sLB}, v{vST8}")
late_addrs(False)
e.wv(misc["half"])
stamp(3)
w2_unit_out(vST8, 64, (0,))
tk_tag = e.v(tag_load)
e.wv(tk)
tS = w2_unit_out(vST8, 64, (1,))
get_tag(tk_tag)
e.wv(tS)
store_flag(rWS, sP0F)
stamp(4)
e("s_barrier")
tk = e.v(fl_load(vFP))
spin_check(tk, vFP, "lsleep")
stamp(5)
w2cur[0] = None
for k in range(35):
    w2_load(k)
e(f"s_mov_b32 s{sFL}, 0")
tk = e.v(fl_load(vFH))
stamp(8)
spin_check(tk, vFH, "lsleep")

e("Lg2:")
NPRE = OPT["npre"]
for x in range(NPRE):
    h_load(x)
e("Lg2b:")
tAll = e.join()
for x in range(NPRE):
    tHl[x] = tAll - (NPRE - 1) + x
stamp(9)
AC = (64, 84)
PRE, OT, TH, AT_, XR, YL, vG_ = 104, 124, 8, 28, 38, 144, 156
NT, PF = 8 * NK, 15
e.smem = False
for x in range(NPRE, PF):
    h_load(x)
fill = []
st = {}
NOP = lambda: None


def ins(s):
    fill.append(lambda: e(s))


def drain():
    while fill:
        fill.pop(0)()


for x in range(NT):
    p, ksl = divmod(x, NK)
    ph, pp = divmod(p, 4)
    acc = AC[p & 1]
    if ksl == 0 and pp >= 1:
        pa = AC[(p - 1) & 1]
        gap = [NOP] * (1 if pp == 3 else 3)
        wr = []
        for d in range(5):
            wr += [lambda d=d, pa=pa, pp=pp: e.d(f"ds_write_b128 v{vP + pp - 1}, {V(pa + 4 * d, 4)} offset:{5120 * (pp - 1) + 1024 * d}")] + gap
        fill[0:0] = [NOP] * 2 + wr
    if p == 4 and ksl == 0:
        for r in range(20):
            ins(f"v_add_f32 v{PRE + r}, v{PRE + r}, v{AC[1] + r}")
            if r % 2:
                ins(f"v_cvt_pk_bf16_f32 v{TH + r // 2}, v{PRE + r - 1}, v{PRE + r}")
            if r == 7:
                fill.append(lambda: e.v(f"buffer_store_dwordx4 {V(TH, 4)}, v{vL16}, {S(rWS, 4)}, s{sXO} offen {SC}"))
            if r == 15:
                fill.append(lambda: e.v(f"buffer_store_dwordx4 {V(TH + 4, 4)}, v{vL16}, {S(rWS, 4)}, s{sXO} offen offset:1024 {SC}"))
        fill.append(lambda: st.__setitem__("xs", e.v(f"buffer_store_dwordx2 {V(TH + 8, 2)}, v{vL8}, {S(rWS, 4)}, s{sXO} offen offset:2048 {SC}")))
        for q in range(4):
            ins(f"v_add_u32 v{vP + q}, 61440, v{vP + q}")
    if p == 5 and ksl == 0:
        assert "xs" in st and len(fill) == 2 + 20, len(fill)
    if x == 5 * NK + OPT["xfl"]:
        e.wv(st["xs"])
        store_flag(rWS, sXF)
        stamp(40, grp=0)
    if x == NT - OPT["yf"]:
        st["fy"] = e.v(fl_load(vFY))
        st["g"] = e.v(f"buffer_load_dword v{vG_}, v{vX}, {S(rWS, 4)}, s{sGB} offen sc1")
    if x == NT - OPT["yl"]:
        spin_check(st["fy"], vFY)
        stamp(18)
        for j in range(3):
            if j == 2:
                setexec(0xffffffff)
            st["y"] = e.v(f"buffer_load_dwordx4 {V(YL + 4 * j, 4)}, v{vYG}, {S(rWS, 4)}, s{sYB} offen sc1")
            e(f"s_add_u32 s{sYB}, s{sYB}, {8 * YTP}")
        setexec(-1)
        e.v(f"buffer_load_dwordx4 {V(XR, 4)}, v{vL16}, {S(rWS, 4)}, s{sXI} offen sc1")
        e.v(f"buffer_load_dwordx4 {V(XR + 4, 4)}, v{vL16}, {S(rWS, 4)}, s{sXI} offen offset:1024 sc1")
        st["x"] = e.v(f"buffer_load_dwordx2 {V(XR + 8, 2)}, v{vL8}, {S(rWS, 4)}, s{sXI} offen offset:2048 sc1")
    if pp == 3 and ksl == 3:
        drain()
        e.wl()
        e("s_barrier")
        stamp(10 if ph else 17)
        for d in range(5):
            for q, dst in enumerate((PRE, OT, TH)):
                fill.append(lambda d=d, q=q, dst=dst: st.__setitem__("pt%d" % d, e.d(f"ds_read_b128 {V(dst + 4 * d, 4)}, v{vP + 3} offset:{5120 * q + 1024 * d}")))
        if ph == 0:
            for r in range(20):
                if r % 4 == 0:
                    fill.append(lambda r=r: e.wl(st["pt%d" % (r // 4)]))
                ins(f"v_add_f32 v{PRE + r}, v{PRE + r}, v{OT + r}")
                ins(f"v_add_f32 v{PRE + r}, v{PRE + r}, v{TH + r}")
    if x % 4 == 0:
        stamp(20 + x // 4, grp=4)
    if x + PF < NT:
        h_load(x + PF)
    e.wv(tHl[x])
    if x == OPT["yfl"]:
        e.wv(tAll)
        store_flag(rST, sFL)
        stamp(19, grp=0)
    for d in range(5):
        c = "0" if ksl == 0 else V(acc + 4 * d, 4)
        e(f"{MF} {V(acc + 4 * d, 4)}, {w2_reg(d, ksl)}, {V(HR + 4 * (x % 16), 4)}, {c}")
        for _ in range(2 if (p in (3, 4) and d < 4) else OPT["fr"]):
            if fill:
                fill.pop(0)()
drain()
stamp(11)
e.wv(st["y"])
for j in range(3):
    if j == 2:
        setexec(0xffffffff)
    e.d(f"ds_write_b128 v{vAW}, {V(YL + 4 * j, 4)} offset:{8 * 160 * j}")
setexec(-1)
acc = AC[1]
e.wl(st["pt4"])
for r in range(0, 20, 2):
    e(f"v_pk_add_f32 {V(PRE + r, 2)}, {V(PRE + r, 2)}, {V(OT + r, 2)}")
    e(f"v_pk_add_f32 {V(TH + r, 2)}, {V(TH + r, 2)}, {V(acc + r, 2)}")
e.wl()
e("s_barrier")
for d in range(5):
    st["at%d" % d] = e.d(f"ds_read_b64_tr_b16 {V(AT_ + 2 * d, 2)}, v{vAR} offset:{16 * 160 * d}")
e.wv(st["x"])
e(f"v_mov_b32 v{vG_ + 1}, v{vG_}")
for r in range(0, 20, 2):
    e(f"v_lshlrev_b32 v{OT + r}, 16, v{XR + r // 2}")
    e(f"v_and_b32 v{OT + r + 1}, 0xffff0000, v{XR + r // 2}")
    e(f"v_pk_add_f32 {V(PRE + r, 2)}, {V(PRE + r, 2)}, {V(TH + r, 2)}")
    e(f"v_pk_add_f32 {V(PRE + r, 2)}, {V(PRE + r, 2)}, {V(OT + r, 2)}")
for d in range(5):
    e.wl(st["at%d" % d])
    for r in (0, 2):
        o = 4 * d + r
        e(f"v_lshlrev_b32 v{TH + o}, 16, v{AT_ + o // 2}")
        e(f"v_and_b32 v{TH + o + 1}, 0xffff0000, v{AT_ + o // 2}")
        e(f"v_pk_add_f32 {V(TH + o, 2)}, {V(TH + o, 2)}, {V(PRE + o, 2)} neg_lo:[0,1] neg_hi:[0,1]")
        e(f"v_pk_fma_f32 {V(PRE + o, 2)}, {V(TH + o, 2)}, {V(vG_, 2)}, {V(PRE + o, 2)}")
    e(f"v_cvt_pk_bf16_f32 v{PRE + 4 * d}, v{PRE + 4 * d}, v{PRE + 4 * d + 1}")
    e(f"v_cvt_pk_bf16_f32 v{PRE + 4 * d + 1}, v{PRE + 4 * d + 2}, v{PRE + 4 * d + 3}")
    e.d(f"ds_write_b64 v{vOW}, {V(PRE + 4 * d, 2)} offset:{32 * d}")
to = [e.d(f"ds_read_b128 {V(HR + 4 * j, 4)}, v{vOR + j}") for j in range(3)]
for j in range(3):
    e.wl(to[j])
    if j == 2:
        setexec(0xffffffff)
    e.v(f"buffer_store_dwordx4 {V(HR + 4 * j, 4)}, v{vOG + j}, {S(rOUT, 4)}, s{sOB} offen")
if OPT["stamp"]:
    setexec(-1)
    stamp(15)
    e.wv()
    stamp(12)
    stamp(13, rt=True)
    e(f"s_lshl2_add_u32 s{sT[0]}, s2, s{sW}")
    e(f"s_lshl_b32 s{sT[0]}, s{sT[0]}, 8")
    e(f"s_add_u32 s{sT[0]}, s{sT[0]}, {WS_STAMP}")
    e(f"v_lshlrev_b32 v{vTMP}, 2, v{vLANE}")
    e.v(f"buffer_store_dword v{vSTAMP}, v{vTMP}, {S(rWS, 4)}, s{sT[0]} offen")
if OPT["dbgtime"]:
    lab = e.label("Ldt")
    e.wv()
    e("s_and_b32 s92, s2, 31")
    e(f"s_add_u32 s92, s92, s{sW}")
    e("s_cmp_lg_u32 s92, 0")
    e(f"s_cbranch_scc1 {lab}")
    e("s_cmp_ge_u32 s2, 224")
    e(f"s_cbranch_scc1 {lab}")
    e.raw("s_memrealtime s[92:93]")
    e.raw("s_waitcnt lgkmcnt(0)")
    e("v_mov_b32 v8, s94")
    e("v_mov_b32 v9, s92")
    e("s_lshr_b32 s92, s2, 2")
    e("s_add_u32 s92, s92, 8")
    e("v_mov_b32 v10, s92")
    e("s_mov_b64 exec, 1")
    e.raw(f"global_store_dwordx2 v10, v[8:9], {S(pDBG, 2)}")
    e(f"{lab}:")
e("s_endpgm")
for x in cold:
    e.raw(x)
e("Lend:")
e("s_endpgm")

body, nn = insert_nops(e.L)
if OPT["align"]:
    body, nw, npad, size = align_pass(body)
    print("widened:", nw, "pads:", npad, "bytes:", size, file=sys.stderr)
    assert size < 128 * 384
print("instructions:", len(body), "nops inserted:", nn, file=sys.stderr)
hdr = open("gated_mix__ssm_conv_s4__dense_activation_relu__prompt.s.ref").read().split("; Override launch")[0]
out = [hdr.rstrip("\n"),
       "; generated by work/gen.py (hand-written generator)",
       "; @launch grid=(256,1,1) block=(256,1,1) lds=163840",
       '.amdgcn_target "amdgcn-amd-amdhsa--gfx950"', ".text", f".globl {KN}", ".p2align 8", f".type {KN},@function"]
out += body
out += ['.section .rodata,"a"', ".p2align 6", f".amdhsa_kernel {KN}",
        "  .amdhsa_next_free_vgpr 512", "  .amdhsa_next_free_sgpr 102", "  .amdhsa_accum_offset 256",
        "  .amdhsa_group_segment_fixed_size 0", "  .amdhsa_kernarg_size 128", "  .amdhsa_user_sgpr_count 2",
        "  .amdhsa_user_sgpr_kernarg_segment_ptr 1", "  .amdhsa_system_sgpr_workgroup_id_x 1", ".end_amdhsa_kernel"]
open(sys.argv[1], "w").write("\n".join(out) + "\n")
```

```python
import sys
from asmlib import *

KN = "gated_mix__ssm_conv_s4__dense_activation_relu__prompt_kernel"
OPT = dict(stamp=0, kst=0, dbgtime=0, align=1, spin=20000, sleep=4, lsleep=8, nt=3, tlb=1,
           chk=15, nw2=10, gper=5, btick=12, hflag_at=45, cstart=50, cper=4, hchk_at=150, hlag=20, npre=15, bout=8,
           yfl=10, xfl=4, yf=14, yl=6, fr=1, hsc=1, hl=1, delay=0, cpf=1, osc=0)
for a in sys.argv[2:]:
    k, v = a.split("=")
    assert k in OPT, k
    OPT[k] = int(v)

WS_FUT = 0x1000
WS_FW2 = 0x4000
WS_FH = 0x8000
WS_FY = 0x20000
WS_G = 0x30000
WS_FX = 0x40000
UTP, YTP = 4352, 4224
KS = 56 * 1024
WS_UT = 0x100000
WS_YT = 0x400000
WS_W2F = 0x700000
WS_HF = 0xA00000
WS_XB = 0x1100000
WS_END = 0x1380000
WS_STAMP = 0x2000000
WS_SIZE = 0x2100000 if OPT["stamp"] else WS_END

sW, sXCD, sSLOT, sXR, sXC, sRB, sCB, sTB, sDB, sST, sCS, sGATE, sYOK = 3, 4, 5, 6, 7, 8, 9, 10, 11, 12, 13, 14, 15
pU, pARE, pAIM, pBRE, pBIM, pCRE, pCIM, pLDT, pDSK, pW1, pW2, pGW, pOUT, pDBG, pWS = 16, 18, 20, 22, 24, 26, 28, 30, 32, 36, 38, 40, 42, 44, 46
sHBp = list(range(18, 26))
sYB, sOB, sGB, sXO, sXI, sXF = 26, 27, 28, 29, 34, 35
rX, rW, rWS, rOUT, rST, sTAG, rW2 = 48, 52, 56, 60, 64, 68, 96
sXB, sWB, sLB = 70, 71, 72
sT = [73, 74, 75, 76, 77, 78, 79]
sCH, sLDT, sDSK, sP0F, sW2B, sU, sSPIN, sSSM, sC1, sC2, sFL, sKS = 80, 81, 82, 83, 84, 85, 86, 87, 90, 91, 100, 101

vLANE, vI, vG, vSTAMP, vL16, vTMP, vTM2 = 1, 2, 3, 4, 5, 6, 7
vDX, vDW, vXA, vTA = 8, 12, 16, 20
vBAND = 28
vSTW, vSTR, vST8, vA0, vA1, vA2, vA3, vA4 = range(48, 56)
vFL, vZ, vGG, vFT = 56, 58, 59, 60
vUA, vTE, vTE2, vS, vYW, vFP, vFH = range(224, 231)
vP, vFY, vYG, vAW, vAR, vX, vL8, vOW, vOR, vOG = 231, 235, 236, 237, 238, 239, 240, 241, 242, 245
HR = 160
YST = 144
RING = 32768
L_SSM, SSM_SZ = 98304, 12288
K_E, K_O, K_S2A, K_S2B, K_S3 = 8704, 8704 + 1216, 8704 + 2432, 8704 + 2432 + 256, 8704 + 2432 + 512
L_AT = 122880
L_UNIT, L_SCR, L_GW = 135168, 151552, 160512

e = Em()
misc = {}
MF = "v_mfma_f32_16x16x32_bf16"
SC = "sc1"
NK = 7
tag_load = f"global_load_dwordx2 {V(vFL, 2)}, v{vZ}, {S(pDBG, 2)} sc1"


def fl_load(va):
    return f"buffer_load_dwordx2 {V(vFL, 2)}, v{va}, {S(rWS, 4)}, 0 offen sc1"


def setexec(mask):
    if mask == -1:
        e("s_mov_b64 exec, -1")
    else:
        e(f"s_mov_b32 exec_lo, {mask & 0xffffffff:#x}")
        e(f"s_mov_b32 exec_hi, {mask >> 32:#x}")


def stamp(k, rt=False, grp=1):
    if not OPT["stamp"] or (k >= 19 and OPT["kst"] != grp):
        return
    e.s(f"s_mem{'real' if rt else ''}time s[94:95]")
    e.wl()
    e(f"v_writelane_b32 v{vSTAMP}, s94, {k}")


def first_stamp():
    if OPT["stamp"]:
        e(f"v_writelane_b32 v{vSTAMP}, s92, 0")
        e(f"v_writelane_b32 v{vSTAMP}, s94, 1")
        stamp(2)


cold = []


def spin_check(tk, va, sl="sleep"):
    lp, dn = e.label("Lsp"), e.label("Lsd")
    e.wv(tk)
    e(f"v_cmp_ne_u64 vcc, {S(sTAG, 2)}, {V(vFL, 2)}")
    e(f"s_cbranch_vccnz {lp}")
    e(f"{dn}:")
    cold.extend([f"{lp}:", f"s_mov_b32 s{sSPIN}, 0", f"{lp}x:", f"s_sleep {OPT[sl]}", fl_load(va), "s_waitcnt vmcnt(0)",
                 f"v_cmp_ne_u64 vcc, {S(sTAG, 2)}, {V(vFL, 2)}", f"s_cbranch_vccz {dn}",
                 f"s_add_u32 s{sSPIN}, s{sSPIN}, 1", f"s_cmp_gt_u32 s{sSPIN}, {OPT['spin']}", f"s_cbranch_scc1 {dn}", f"s_branch {lp}x"])


def get_tag(tk):
    lp, dn = e.label("Ltg"), e.label("Ltd")
    e.wv(tk)
    e(f"v_readfirstlane_b32 s{sTAG + 1}, v{vFL + 1}")
    e(f"v_readfirstlane_b32 s{sTAG}, v{vFL}")
    e(f"s_cmp_eq_u32 s{sTAG + 1}, 0")
    e(f"s_cbranch_scc1 {lp}")
    e(f"{dn}:")
    cold.extend([f"{lp}:", f"s_mov_b32 s{sSPIN}, 0", f"{lp}x:", f"s_sleep {OPT['sleep']}", tag_load, "s_waitcnt vmcnt(0)",
                 f"v_readfirstlane_b32 s{sTAG + 1}, v{vFL + 1}", f"v_readfirstlane_b32 s{sTAG}, v{vFL}",
                 f"s_add_u32 s{sSPIN}, s{sSPIN}, 1", f"s_cmp_lg_u32 s{sTAG + 1}, 0", f"s_cbranch_scc1 {dn}",
                 f"s_cmp_gt_u32 s{sSPIN}, {OPT['spin']}", f"s_cbranch_scc1 {dn}", f"s_branch {lp}x"])
    e(f"v_mov_b32 v{vFT}, s{sTAG}")
    e(f"v_mov_b32 v{vFT + 1}, s{sTAG + 1}")


def store_flag(srd, soff):
    e("s_mov_b64 exec, 1")
    e.v(f"buffer_store_dwordx2 {V(vFT, 2)}, off, {S(srd, 4)}, s{soff} {SC}")
    e("s_mov_b64 exec, -1")


def tr_addr0(dst):
    e(f"v_lshrrev_b32 v{vTMP}, 2, v{vI}")
    e(f"v_and_b32 v{vTM2}, 1, v{vG}")
    e(f"v_lshl_or_b32 v{vTM2}, v{vTM2}, 2, v{vTMP}")
    e(f"v_lshl_add_u32 v{vTMP}, v{vG}, 3, v{vTMP}")
    e(f"v_lshlrev_b32 v{vTMP}, 8, v{vTMP}")
    e(f"v_lshl_add_u32 v{vTMP}, v{vTM2}, 5, v{vTMP}")
    e(f"v_and_b32 v{vTM2}, 3, v{vI}")
    e(f"v_lshl_add_u32 v{dst}, v{vTM2}, 3, v{vTMP}")


def wide_dma_addr(dst, pitch, d1=1):
    e(f"v_lshlrev_b32 v{vTMP}, 1, v{vG}")
    e(f"v_xor_b32 v{vTMP}, v{vTMP}, v{vI}")
    e(f"v_mul_u32_u24 v{vTM2}, {pitch}, v{vG}")
    e(f"v_lshl_add_u32 v{dst}, v{vTMP}, 4, v{vTM2}")
    e(f"v_xor_b32 v{vTMP}, 8, v{vTMP}")
    e(f"v_lshl_add_u32 v{dst + d1}, v{vTMP}, 4, v{vTM2}")


def w2_reg(dtl, ksl):
    return A(108 + 4 * (NK * dtl + ksl), 4)


W2ORD = list(range(5, 35)) + list(range(5))
w2cur = [None]


def w2_load(n):
    dtl, ksl = divmod(n, NK)
    if w2cur[0] != (dtl, ksl >> 2):
        w2cur[0] = (dtl, ksl >> 2)
        e(f"s_add_u32 s{sT[4]}, s{sW2B}, {dtl * KS + (ksl >> 2) * 4096}")
    return e.v(f"buffer_load_dwordx4 {w2_reg(dtl, ksl)}, v{vL16}, {S(rWS, 4)}, s{sT[4]} offen offset:{(ksl & 3) * 1024} sc1")


tHl = {}


def h_load(x):
    p, ksl = divmod(x, NK)
    if ksl == 4:
        e(f"s_add_u32 s{sHBp[p]}, s{sHBp[p]}, 4096")
    tHl[x] = e.v(f"buffer_load_dwordx4 {V(HR + 4 * (x % 16), 4)}, v{vL16}, {S(rWS, 4)}, s{sHBp[p]} offen offset:{(ksl & 3) * 1024}{' sc1' if OPT['hl'] else ''}")


def set_srds():
    for r, p in ((rX, pU), (rW, pW1), (rWS, pWS), (rOUT, pOUT), (rST, pWS), (rW2, pW2)):
        e(f"s_mov_b64 {S(r, 2)}, {S(p, 2)}")


def late_addrs(with_ut):
    e(f"s_lshr_b32 s{sT[0]}, s{sKS}, 1")
    e(f"v_bfe_u32 v{vTMP}, v{vLANE}, 1, 2")
    e(f"v_add_u32 v{vTMP}, s{sT[0]}, v{vTMP}")
    e(f"v_mul_u32_u24 v{vTMP}, 5, v{vTMP}")
    e(f"s_mul_i32 s{sT[1]}, s{sDB}, 5")
    e(f"v_and_b32 v{vTM2}, 1, v{vLANE}")
    e(f"v_lshl_add_u32 v{vTM2}, v{vTM2}, 2, s{sT[1]}")
    e(f"v_lshrrev_b32 v{vTM2}, 3, v{vTM2}")
    e(f"v_add_lshl_u32 v{vTMP}, v{vTMP}, v{vTM2}, 6")
    e(f"v_add_u32 v{vFP}, {WS_FW2}, v{vTMP}")
    if with_ut:
        e(f"s_lshr_b32 s{sT[1]}, s{sCH}, 6")
        e(f"s_lshl_b32 s{sT[1]}, s{sT[1]}, 10")
        e(f"s_add_u32 s{sT[1]}, s{sT[1]}, {WS_FUT}")
        e(f"v_lshl_add_u32 v{vTMP}, v{vI}, 6, s{sT[1]}")
        e(f"v_cmp_lt_u32 vcc, 31, v{vLANE}")
        e(f"v_cndmask_b32 v{vFP}, v{vFP}, v{vTMP}, vcc")
    e(f"v_and_b32 v{vTMP}, 3, v{vLANE}")
    e(f"v_add_u32 v{vTMP}, s{sT[0]}, v{vTMP}")
    e(f"v_and_b32 v{vTM2}, 4, v{vLANE}")
    e(f"v_lshl_add_u32 v{vTMP}, v{vTM2}, 3, v{vTMP}")
    e(f"v_cmp_gt_u32 vcc, 8, v{vLANE}")
    e(f"s_lshl_b32 s{sT[0]}, s{sTB}, 5")
    e(f"v_cndmask_b32 v{vTMP}, 27, v{vTMP}, vcc")
    e(f"v_xor_b32 v{vTMP}, s{sT[0]}, v{vTMP}")
    e(f"v_lshlrev_b32 v{vTMP}, 6, v{vTMP}")
    e(f"v_add_u32 v{vFH}, {WS_FH}, v{vTMP}")
    e(f"s_lshl_b32 s{sT[1]}, s{sKS}, 10")
    e(f"s_add_u32 s{sT[1]}, s{sT[1]}, {WS_HF}")
    for p in range(4):
        e(f"s_add_u32 s{sT[0]}, s{sW}, {p + 1}")
        e(f"s_and_b32 s{sT[0]}, s{sT[0]}, 3")
        e(f"s_lshl2_add_u32 s{sHBp[4 + p]}, s{sTB}, s{sT[0]}")
        e(f"s_xor_b32 s{sHBp[p]}, s{sHBp[4 + p]}, 4")
        for q in (p, 4 + p):
            e(f"s_mul_i32 s{sHBp[q]}, s{sHBp[q]}, {KS}")
            e(f"s_add_u32 s{sHBp[q]}, s{sHBp[q]}, s{sT[1]}")
        e(f"s_mul_i32 s{sT[0]}, s{sT[0]}, {3 * 5120}")
        e(f"v_add_u32 v{vP + p}, s{sT[0]}, v{vL16}")
    e(f"s_mul_i32 s{sYB}, s{sDB}, 80")
    e(f"s_mul_i32 s{sT[1]}, s{sW}, 20")
    e(f"s_add_u32 s{sYB}, s{sYB}, s{sT[1]}")
    e(f"v_add_lshl_u32 v{vTMP}, v{vLANE}, s{sYB}, 6")
    e(f"v_add_u32 v{vTMP}, {WS_FY}, v{vTMP}")
    e(f"s_lshl2_add_u32 s{sXO}, s2, s{sW}")
    e(f"s_xor_b32 s{sXI}, s{sXO}, 4")
    e(f"s_lshl_b32 s{sXF}, s{sXI}, 6")
    e(f"s_add_u32 s{sXF}, s{sXF}, {WS_FX}")
    e(f"v_mov_b32 v{vTM2}, s{sXF}")
    e(f"v_cmp_lt_u32 vcc, 19, v{vLANE}")
    e(f"s_xor_b32 s{sXF}, s{sXF}, 256")
    e(f"s_mul_i32 s{sXO}, s{sXO}, 2560")
    e(f"v_cndmask_b32 v{vFY}, v{vTMP}, v{vTM2}, vcc")
    e(f"s_add_u32 s{sXO}, s{sXO}, {WS_XB}")
    e(f"s_mul_i32 s{sXI}, s{sXI}, 2560")
    e(f"s_add_u32 s{sXI}, s{sXI}, {WS_XB}")
    e(f"v_lshlrev_b32 v{vL8}, 3, v{vLANE}")
    e(f"s_mul_i32 s{sYB}, s{sYB}, {YTP}")
    e(f"s_lshl_b32 s{sT[0]}, s{sTB}, 7")
    e(f"s_add_u32 s{sYB}, s{sYB}, s{sT[0]}")
    e(f"s_add_u32 s{sYB}, s{sYB}, {WS_YT}")
    e(f"v_lshrrev_b32 v{vTMP}, 3, v{vLANE}")
    e(f"v_and_b32 v{vTM2}, 0x70, v{vL16}")
    e(f"v_mul_u32_u24 v{vYG}, {YTP}, v{vTMP}")
    e(f"v_add_u32 v{vYG}, v{vYG}, v{vTM2}")
    e(f"v_add_u32 v{vTMP}, s{sT[1]}, v{vTMP}")
    e(f"v_mul_u32_u24 v{vTMP}, 160, v{vTMP}")
    e(f"v_add_u32 v{vTMP}, {L_AT}, v{vTMP}")
    e(f"v_add_u32 v{vAW}, v{vTMP}, v{vTM2}")
    e(f"v_lshrrev_b32 v{vTMP}, 2, v{vLANE}")
    e(f"v_mul_u32_u24 v{vTMP}, 160, v{vTMP}")
    e(f"v_and_b32 v{vTM2}, 0x18, v{vL8}")
    e(f"s_lshl_b32 s{sT[0]}, s{sW}, 5")
    e(f"s_add_u32 s{sT[0]}, s{sT[0]}, {L_AT}")
    e(f"v_add3_u32 v{vAR}, v{vTMP}, v{vTM2}, s{sT[0]}")
    e(f"s_mul_i32 s{sT[0]}, s{sW}, 2816")
    e(f"v_mul_u32_u24 v{vTMP}, 176, v{vI}")
    e(f"v_lshl_add_u32 v{vTMP}, v{vG}, 3, v{vTMP}")
    e(f"v_add_u32 v{vOW}, s{sT[0]}, v{vTMP}")
    for j in range(3):
        e(f"v_add_u32 v{vX}, {64 * j}, v{vLANE}")
        e(f"v_mul_u32_u24 v{vTMP}, 6554, v{vX}")
        e(f"v_lshrrev_b32 v{vTMP}, 16, v{vTMP}")
        e(f"v_add_lshl_u32 v{vTM2}, v{vX}, v{vTMP}, 4")
        e(f"v_add_u32 v{vOR + j}, s{sT[0]}, v{vTM2}")
        e(f"v_mul_u32_u24 v{vTMP}, 1104, v{vTMP}")
        e(f"v_add_u32 v{vOG + j}, v{vTMP}, v{vTM2}")
    e(f"s_lshl2_add_u32 s{sGB}, s{sTB}, s{sW}")
    e(f"s_mul_i32 s{sOB}, s{sGB}, {16 * 1280}")
    e(f"s_mul_i32 s{sT[0]}, s{sDB}, 160")
    e(f"s_add_u32 s{sOB}, s{sOB}, s{sT[0]}")
    e(f"s_lshl_b32 s{sGB}, s{sGB}, 6")
    e(f"s_add_u32 s{sGB}, s{sGB}, {WS_G}")
    e(f"v_lshlrev_b32 v{vX}, 2, v{vI}")


def w2_unit_issue(vad, lds_sg, lds_imm):
    wide_dma_addr(vad, 1280)
    e(f"s_mul_i32 s{sT[0]}, s{sU}, 13108")
    e(f"s_lshr_b32 s{sT[0]}, s{sT[0]}, 16")
    e(f"s_mul_i32 s{sT[1]}, s{sT[0]}, 5")
    e(f"s_sub_u32 s{sT[1]}, s{sU}, s{sT[1]}")
    e(f"s_mul_i32 s{sC2}, s{sT[0]}, {64 * 1280}")
    e(f"s_lshl_b32 s{sT[2]}, s{sT[1]}, 8")
    e(f"s_add_u32 s{sC2}, s{sC2}, s{sT[2]}")
    for m in range(16):
        row = 32 * (m >> 3) + 16 * (m & 1) + 4 * ((m >> 1) & 3)
        e(f"s_mov_b32 m0, {lds_imm + m * 1024}" if lds_sg is None else f"s_add_u32 m0, s{lds_sg}, {lds_imm + m * 1024}")
        e(f"s_add_u32 s{sT[5]}, s{sC2}, {row * 1280}")
        t = e.v(f"buffer_load_dwordx4 v{vad + ((m >> 1) & 1)}, {S(rW2, 4)}, s{sT[5]} offen {'nt ' if OPT['nt'] & 1 else ''}lds")
        if m == 7:
            misc["half"] = t
    e(f"s_mul_i32 s{sC1}, s{sT[1]}, {8 * KS}")
    e(f"s_lshl_b32 s{sT[2]}, s{sT[0]}, 11")
    e(f"s_add_u32 s{sC1}, s{sC1}, s{sT[2]}")
    e(f"s_add_u32 s{sC1}, s{sC1}, {WS_W2F}")
    e(f"s_lshl_b32 s{sP0F}, s{sU}, 6")
    e(f"s_add_u32 s{sP0F}, s{sP0F}, {WS_FW2}")
    return t


def w2_unit_out(vbase, F, kks):
    tks = {}
    for ft in range(8):
        e(f"v_xor_b32 v{vTMP}, {ft << 5}, v{vbase}")
        for kk in kks:
            for hh in range(2):
                tks[ft, kk] = e.d(f"ds_read_b64_tr_b16 {V(F + 8 * ft + 4 * kk + 2 * hh, 2)}, v{vTMP} offset:{kk * 8192 + hh * 1024}")
    for ft in range(8):
        e(f"s_add_u32 s{sT[3]}, s{sC1}, {ft * KS}")
        for kk in kks:
            e.wl(tks[ft, kk])
            t = e.v(f"buffer_store_dwordx4 {V(F + 8 * ft + 4 * kk, 4)}, v{vL16}, {S(rWS, 4)}, s{sT[3]} offen offset:{1024 * kk} {SC}")
    return t


def tlb_touch():
    e(f"s_mul_i32 s{sT[0]}, s{sSLOT}, 3")
    e(f"s_add_u32 s{sT[0]}, s{sT[0]}, s{sW}")
    e(f"s_mul_i32 s{sT[0]}, s{sT[0]}, 5")
    e(f"v_add_lshl_u32 v{vTMP}, v{vLANE}, s{sT[0]}, 16")
    e(f"v_subrev_u32 v{vTM2}, {312 << 16}, v{vTMP}")
    e("s_mov_b64 exec, 31")
    e.v(f"buffer_load_dword v62, v{vTMP}, {S(rWS, 4)}, 0 offen offset:64 sc1")
    e.v(f"buffer_load_dword v62, v{vTM2}, {S(rOUT, 4)}, 0 offen sc1")
    e("s_mov_b64 exec, -1")


e(f"{KN}:")
e("s_cmp_ge_u32 s2, 256")
e("s_cbranch_scc1 Lend")
e.s("s_load_dwordx16 s[16:31], s[0:1], 0")
e.s("s_load_dwordx16 s[32:47], s[0:1], 64")
if OPT["stamp"]:
    e.raw("s_memtime s[92:93]")
if OPT["stamp"] or OPT["dbgtime"]:
    e.raw("s_memrealtime s[94:95]")
e("s_getpc_b64 s[88:89]")
e("Lpc:")
e(f"v_lshrrev_b32 v{vTMP}, 6, v0")
e(f"v_and_b32 v{vLANE}, 63, v0")
e(f"v_readfirstlane_b32 s{sW}, v{vTMP}")
e(f"v_and_b32 v{vI}, 15, v0")
e(f"v_bfe_u32 v{vG}, v0, 4, 2")
e(f"v_lshlrev_b32 v{vL16}, 4, v{vLANE}")
e(f"s_and_b32 s{sXCD}, s2, 7")
e(f"s_lshr_b32 s{sSLOT}, s2, 3")
e(f"s_lshl2_add_u32 s{sT[0]}, s{sSLOT}, s{sW}")
e(f"s_mul_i32 s{sT[0]}, s{sT[0]}, 384")
e(f"v_and_b32 v{vTMP}, 3, v0")
e(f"v_lshl_add_u32 v{vTMP}, v{vTMP}, 7, s{sT[0]}")
e(f"v_min_u32 v{vTMP}, Lend-Lpc, v{vTMP}")
if OPT["cpf"]:
    e.v(f"global_load_dword v62, v{vTMP}, s[88:89]")
e(f"v_mov_b32 v{vZ}, 0")
e(f"s_lshr_b32 s{sXR}, s{sXCD}, 1")
e(f"s_and_b32 s{sXC}, s{sXCD}, 1")
e(f"s_lshr_b32 s{sT[0]}, s{sSLOT}, 3")
e(f"s_lshl2_add_u32 s{sT[0]}, s{sXR}, s{sT[0]}")
e(f"s_lshl1_add_u32 s{sTB}, s{sT[0]}, s{sXC}")
e(f"s_and_b32 s{sDB}, s{sSLOT}, 7")
e(f"s_lshl_b32 s{sLB}, s{sW}, 12")
e(f"s_lshl2_add_u32 s{sKS}, s{sXC}, s{sW}")
e(f"s_mul_i32 s{sKS}, s{sKS}, 7")
e(f"s_mul_i32 s{sW2B}, s{sDB}, {5 * KS}")
e(f"s_lshl_b32 s{sT[0]}, s{sKS}, 10")
e(f"s_add_u32 s{sW2B}, s{sW2B}, s{sT[0]}")
e(f"s_add_u32 s{sW2B}, s{sW2B}, {WS_W2F}")
for r, sz in ((rX, 2621440), (rW, 2211840), (rWS, WS_SIZE), (rOUT, 2621440), (rST, 0), (rW2, 2211840)):
    e(f"s_mov_b32 s{r + 2}, {sz}")
    e(f"s_mov_b32 s{r + 3}, 0x20000")
e(f"s_mov_b32 s{sP0F}, 0")
e(f"s_cmp_lt_u32 s{sSLOT}, 4")
e("s_cbranch_scc1 Lfree")
st_entry = e.state()
e(f"s_sub_u32 s{sSLOT}, s{sSLOT}, 4")

e(f"s_and_b32 s{sT[0]}, s{sSLOT}, 3")
e(f"s_lshl2_add_u32 s{sRB}, s{sXR}, s{sT[0]}")
e(f"s_lshr_b32 s{sT[1]}, s{sSLOT}, 2")
e(f"s_mul_i32 s{sCB}, s{sXC}, 7")
e(f"s_add_u32 s{sCB}, s{sCB}, s{sT[1]}")
e(f"s_mul_i32 s{sT[0]}, s{sT[0]}, 5")
e(f"s_lshr_b32 s{sT[0]}, s{sT[0]}, 1")
e(f"s_mul_i32 s{sT[1]}, s{sCB}, 3")
e(f"s_add_u32 s{sST}, s{sT[0]}, s{sT[1]}")
e(f"s_mul_i32 s{sT[0]}, s{sST}, 6554")
e(f"s_lshr_b32 s{sT[0]}, s{sT[0]}, 16")
e(f"s_mul_i32 s{sT[0]}, s{sT[0]}, 10")
e(f"s_sub_u32 s{sST}, s{sST}, s{sT[0]}")
e(f"s_mov_b32 s{sCS}, s{sST}")
e(f"s_mul_i32 s{sCH}, s{sXCD}, 28")
e(f"s_add_u32 s{sCH}, s{sCH}, s{sSLOT}")
e(f"s_mul_i32 s{sCH}, s{sCH}, 3")
e(f"s_add_u32 s{sCH}, s{sCH}, s{sW}")
e(f"s_cmp_lt_u32 s{sCH}, 640")
e(f"s_cselect_b32 s{sYOK}, {WS_SIZE}, 0")
e(f"s_min_u32 s{sCH}, s{sCH}, 639")
e(f"s_lshl_b32 s{sT[0]}, s{sCH}, 8")
e(f"v_lshl_add_u32 v63, v{vLANE}, 2, s{sT[0]}")
e(f"v_lshrrev_b32 v{vTMP}, 3, v{vLANE}")
e(f"v_mul_u32_u24 v{vTM2}, 1280, v{vTMP}")
e(f"v_and_b32 v{vTMP}, 7, v{vLANE}")
e(f"v_xor_b32 v{vTMP}, v{vTMP}, v{vG}")
e(f"v_lshl_add_u32 v{vDX}, v{vTMP}, 4, v{vTM2}")
e(f"v_xor_b32 v{vDX + 1}, 64, v{vDX}")
e(f"v_add_u32 v{vDX + 2}, {2 * 9216}, v{vDX}")
e(f"v_add_u32 v{vDX + 3}, {3 * 9216}, v{vDX + 1}")
e(f"v_add_u32 v{vDX + 1}, 9216, v{vDX + 1}")
wide_dma_addr(vDW, 3456, 2)
e(f"s_cmp_eq_u32 s{sCB}, 13")
e(f"s_cselect_b32 s{sT[0]}, 8, 0")
e(f"v_and_b32 v{vTMP}, s{sT[0]}, v{vI}")
e(f"v_lshl_add_u32 v{vDW}, v{vTMP}, 27, v{vDW}")
e(f"v_xor_b32 v{vTMP}, s{sT[0]}, v{vTMP}")
e(f"v_lshl_add_u32 v{vDW + 2}, v{vTMP}, 27, v{vDW + 2}")
e(f"v_add_u32 v{vDW + 1}, 12800, v{vDW}")
e(f"v_add_u32 v{vDW + 3}, {3 * 12800}, v{vDW + 2}")
e(f"v_add_u32 v{vDW + 2}, {2 * 12800}, v{vDW + 2}")
e(f"s_lshr_b32 s{sT[0]}, s{sW}, 1")
e(f"s_lshl1_add_u32 s{sGATE}, s{sCB}, s{sT[0]}")
e(f"s_lshl2_add_u32 s{sXB}, s{sRB}, s{sW}")
e(f"s_mul_i32 s{sXB}, s{sXB}, {32 * 1280}")
e(f"s_lshl_b32 s{sT[0]}, s{sST}, 7")
e(f"s_add_u32 s{sXB}, s{sXB}, s{sT[0]}")
e(f"s_lshl2_add_u32 s{sWB}, s{sST}, s{sW}")
e(f"s_mul_i32 s{sWB}, s{sWB}, {16 * 3456}")
e(f"s_lshl_b32 s{sT[0]}, s{sCB}, 8")
e(f"s_add_u32 s{sWB}, s{sWB}, s{sT[0]}")


def next_stage_ops():
    def a():
        e(f"s_add_u32 s{sST}, s{sST}, 1")
        e(f"s_cmp_eq_u32 s{sST}, 10")
        e(f"s_cselect_b32 s{sT[5]}, 9, -1")

    def b():
        e(f"s_mul_i32 s{sT[6]}, s{sT[5]}, 128")
        e(f"s_sub_u32 s{sXB}, s{sXB}, s{sT[6]}")

    def c():
        e(f"s_mul_i32 s{sT[6]}, s{sT[5]}, {64 * 3456}")
        e(f"s_sub_u32 s{sWB}, s{sWB}, s{sT[6]}")

    def d():
        e(f"s_cmp_eq_u32 s{sST}, 10")
        e(f"s_cselect_b32 s{sST}, 0, s{sST}")
    return [a, b, c, d]


def stage_dma_ops(buf, w=None, parts="xw", setm0=True):
    ops = []
    for part, base, va, srd, lo, dw in (("x", sXB, vDX, rX, 0, 32 * 1280), ("w", sWB, vDW, rW, 16384, 16 * 3456)):
        if part not in parts:
            continue
        for j in range(4):
            def op(j=j, base=base, va=va, srd=srd, lo=lo, dw=dw):
                so = base
                if w is None:
                    if j == 0 and setm0:
                        e(f"s_add_u32 m0, s{sLB}, {buf + lo}")
                else:
                    so = sT[2]
                    if j == 0:
                        e(f"s_mov_b32 m0, {buf + lo + w * 4096}")
                        e(f"s_sub_u32 s{so}, s{base}, {(3 - w) * dw}")
                return e.v(f"buffer_load_dwordx4 v{va + j}, {S(srd, 4)}, s{so} offen offset:{1024 * j} lds")
            ops.append(op)
    return ops


def g1_frag_addrs():
    e(f"s_and_b32 s{sT[0]}, s{sW}, 1")
    e(f"s_lshl_b32 s{sT[0]}, s{sT[0]}, 13")
    e(f"v_lshrrev_b32 v{vTMP}, 1, v{vI}")
    e(f"v_xor_b32 v{vTMP}, v{vTMP}, v{vG}")
    e(f"v_lshl_add_u32 v{vTM2}, v{vI}, 7, s{sT[0]}")
    e(f"v_lshl_add_u32 v{vXA}, v{vTMP}, 4, v{vTM2}")
    e(f"v_xor_b32 v{vXA + 1}, 64, v{vXA}")
    e(f"v_add_u32 v{vXA + 2}, 0x10000, v{vXA}")
    e(f"v_add_u32 v{vXA + 3}, 0x10000, v{vXA + 1}")
    tr_addr0(vTA)
    e(f"s_lshr_b32 s{sT[1]}, s{sW}, 1")
    e(f"s_lshl_b32 s{sT[1]}, s{sT[1]}, 7")
    e(f"v_xor_b32 v{vTA}, s{sT[1]}, v{vTA}")
    for i in range(1, 4):
        e(f"v_xor_b32 v{vTA + i}, {i << 5}, v{vTA}")
    for i in range(4):
        e(f"v_add_u32 v{vTA + 4 + i}, 0x10000, v{vTA + i}")


GWR = 136


def gate_issue():
    lab = e.label("Lng")
    e(f"s_cmp_lg_u32 s{sGATE}, 27")
    e(f"s_cbranch_scc1 {lab}")
    e.raw(f"global_load_dwordx4 {V(GWR, 4)}, v{vL16}, {S(pGW, 2)}")
    e(f"v_add_u32 v134, 1024, v{vL16}")
    e("v_min_u32 v134, 0x4f0, v134")
    e.raw(f"global_load_dwordx4 {V(GWR + 4, 4)}, v134, {S(pGW, 2)}")
    e(f"{lab}:")


def gate_store():
    lab = e.label("Lng")
    e(f"s_cmp_lg_u32 s{sGATE}, 27")
    e(f"s_cbranch_scc1 {lab}")
    e(f"v_add_u32 v{vTMP}, {L_GW}, v{vL16}")
    e(f"v_add_u32 v134, {L_GW}, v134")
    e.raw(f"ds_write_b128 v{vTMP}, {V(GWR, 4)}")
    e.raw(f"ds_write_b128 v134, {V(GWR + 4, 4)}")
    e(f"{lab}:")


e(f"s_cmp_eq_u32 s{sW}, 3")
e("s_cbranch_scc1 Lbeta")
st_ab = e.state()

e.wl()
first_stamp()
gate_issue()
PR = 128
tP = [e.v(f"global_load_dword v{PR + i}, v63, {S(p, 2)}{' nt' if OPT['nt'] & 2 else ''}") for i, p in enumerate((pARE, pAIM, pBRE, pBIM, pCRE, pCIM))]
e("s_barrier")
e(f"s_and_b32 s{sT[0]}, s{sCH}, 0xfffe")
e(f"s_lshl_b32 s{sT[0]}, s{sT[0]}, 1")
e.s(f"s_load_dword s{sLDT}, {S(pLDT, 2)}, s{sT[0]}")
e.s(f"s_load_dword s{sDSK}, {S(pDSK, 2)}, s{sT[0]}")
set_srds()
for op in stage_dma_ops(0, parts="w"):
    tW0 = op()
if OPT["tlb"]:
    tlb_touch()
e(f"s_mul_i32 s{sSSM}, s{sW}, {SSM_SZ}")
e(f"s_add_u32 s{sSSM}, s{sSSM}, {L_SSM}")
e(f"v_add_u32 v{vSTW}, s{sSSM}, v{vL16}")
e(f"v_lshl_add_u32 v{vST8}, v{vLANE}, 3, s{sSSM}")
e("v_mov_b32 v64, 0"); e("v_mov_b32 v65, 0"); e("v_mov_b32 v66, 0"); e("v_mov_b32 v67, 0")
for i in range(3):
    e.d(f"ds_write_b128 v{vSTW}, v[64:67] offset:{K_E + i * 1024}")
e.d(f"ds_write_b64 v{vST8}, v[64:65] offset:{K_E + 3072}")
e(f"v_mul_u32_u24 v{vTMP}, 544, v{vI}")
e(f"v_lshl_add_u32 v{vTMP}, v{vG}, 4, v{vTMP}")
e(f"v_add_u32 v{vSTR}, s{sSSM}, v{vTMP}")
g1_frag_addrs()
for op in next_stage_ops() + next_stage_ops():
    op()
e(f"v_lshlrev_b32 v68, 4, v{vI}")
e(f"v_lshrrev_b32 v{vTMP}, 1, v{vG}")
e(f"v_lshl_add_u32 v{vTMP}, v{vTMP}, 8, v68")
e(f"v_and_b32 v{vTM2}, 1, v{vG}")
e(f"v_lshl_add_u32 v{vTMP}, v{vTM2}, 3, v{vTMP}")
e(f"v_sub_u32 v{vA0}, s{sSSM}, v{vTMP}")
e(f"v_lshl_add_u32 v{vTMP}, v{vG}, 8, v68")
e(f"v_sub_u32 v{vA1}, s{sSSM}, v{vTMP}")
e(f"v_lshrrev_b32 v69, 1, v{vI}")
e(f"v_and_b32 v70, 1, v{vI}")
e(f"v_lshl_add_u32 v{vTMP}, v{vG}, 4, v69")
e(f"v_lshlrev_b32 v{vTMP}, 2, v{vTMP}")
e(f"v_lshl_add_u32 v{vTM2}, v70, 8, s{sSSM}")
e(f"v_sub_u32 v{vA2}, v{vTM2}, v{vTMP}")
e(f"v_lshl_add_u32 v{vTMP}, v{vG}, 5, v69")
e(f"v_lshlrev_b32 v{vTMP}, 2, v{vTMP}")
e(f"v_lshl_add_u32 v{vTM2}, v70, 1, s{sSSM}")
e(f"v_sub_u32 v{vA3}, v{vTM2}, v{vTMP}")
e(f"v_mov_b32 v{vA4}, s{sSSM}")
e(f"v_lshlrev_b32 v71, 2, v{vG}")
e(f"v_sub_u32 v{vTMP}, v71, v69")
e(f"v_lshl_add_u32 v{vTMP}, v{vTMP}, 2, s{sSSM}")
e(f"v_mul_u32_u24 v{vTE}, {K_O - K_E}, v70")
e(f"v_add_u32 v{vTMP}, {K_E + 28}, v{vTMP}")
e(f"v_add_u32 v{vTE}, v{vTE}, v{vTMP}")
e(f"v_add_u32 v{vTE2}, 512, v{vTE}")
e(f"v_sub_u32 v{vTMP}, v71, v{vI}")
e(f"v_lshl_add_u32 v{vTMP}, v{vTMP}, 2, s{sSSM}")
e(f"v_add_u32 v{vS}, {K_S2A + 60}, v{vTMP}")
e(f"v_lshl_add_u32 v{vTMP}, v{vI}, 5, s{sSSM}")
e(f"v_lshl_add_u32 v{vUA}, v{vG}, 4, v{vTMP}")
e(f"v_lshl_add_u32 v{vYW}, v{vG}, 3, v{vTMP}")
e(f"s_mov_b32 s{sC1}, 0x00010001")
e(f"s_mov_b32 s{sC2}, 0x3f80")
e(f"v_lshlrev_b32 v68, 3, v{vG}")
for bi, (lo, wd) in enumerate(((11, 3), (6, 5), (5, 7), (4, 9), (12, 2))):
    if bi == 4:
        e(f"s_mov_b32 s{sC2}, 0xffff")
    e(f"v_add_u32 v{vTMP}, {lo}, v{vI}")
    e(f"v_bfm_b32 v{vTMP}, {wd}, v{vTMP}")
    e(f"v_bfe_u32 v{vTMP}, v{vTMP}, v68, 8")
    e(f"v_lshl_or_b32 v{vTMP}, v{vTMP}, 15, v{vTMP}")
    for jj in range(4):
        if jj:
            e(f"v_lshrrev_b32 v{vTM2}, {2 * jj}, v{vTMP}")
        e(f"v_and_b32 v{vTM2}, s{sC1}, v{vTM2 if jj else vTMP}")
        e(f"v_mul_u32_u24 v{vBAND + 4 * bi + jj}, s{sC2}, v{vTM2}")
late_addrs(True)
stamp(19)
e.wl()
for sx in (sLDT, sDSK):
    e(f"s_lshl_b32 s{sT[0]}, s{sx}, 16")
    e(f"s_and_b32 s{sT[1]}, s{sx}, 0xffff0000")
    e(f"s_bitcmp1_b32 s{sCH}, 0")
    e(f"s_cselect_b32 s{sx}, s{sT[1]}, s{sT[0]}")
vDT = 64
e(f"v_mov_b32 v66, s{sLDT}")
e("v_mul_f32 v67, 0x3fb8aa3b, v66")
e("v_fmac_f32 v67, 0x32a5705f, v66")
e("v_exp_f32 v67, v67")
e("v_cvt_pk_bf16_f32 v67, v67, v67")
e(f"v_lshlrev_b32 v{vDT}, 16, v67")
e(f"v_mov_b32 v{vDT + 1}, v{vDT}")

pool = list(range(146, 224, 2)) + list(range(74, 128, 2))


def alloc():
    return pool.pop(0)


def free(*rs):
    pool.extend(rs)


def cmul2(z, q, conj=False):
    d = (alloc(), alloc())
    for s in range(2):
        e(f"v_pk_mul_f32 {V(d[s], 2)}, {V(z[s], 2)}, {V(q[s], 2)} op_sel:[0,0] op_sel_hi:[1,0]")
    for s in range(2):
        e(f"v_pk_fma_f32 {V(d[s], 2)}, {V(z[s], 2)}, {V(q[s], 2)}, {V(d[s], 2)} op_sel:[1,1,0] op_sel_hi:[0,1,1] {'neg_hi' if conj else 'neg_lo'}:[1,0,0]")
    return d


cvt_i = [0]


def put_row(z, row):
    c = (66, 68, 70, 72)[cvt_i[0] % 4]
    cvt_i[0] += 1
    if z is None:
        e(f"v_mov_b32 v{c}, 0x3f80")
        e(f"v_mov_b32 v{c + 1}, 0x3f80")
    else:
        e(f"v_cvt_pk_bf16_f32 v{c}, v{z[0]}, v{z[0] + 1}")
        e(f"v_cvt_pk_bf16_f32 v{c + 1}, v{z[1]}, v{z[1] + 1}")
    e.d(f"ds_write_b64 v{vST8}, {V(c, 2)} offset:{row * 544}")


def read_tile(t):
    for k in range(8):
        e.d(f"ds_read_b128 {A(32 * t + 4 * k, 4)}, v{vSTR} offset:{64 * k}")


e.wv(tP[-1])
stamp(3)
gate_store()
AW, Bc, Cc = [], [], []
for s in range(2):
    aw, b, c = alloc(), alloc(), alloc()
    for dst, src in ((aw, PR), (aw + 1, PR + 1), (b, PR + 2), (b + 1, PR + 3), (c, PR + 4), (c + 1, PR + 5)):
        e(f"v_lshlrev_b32 v{dst}, 16, v{src}" if s == 0 else f"v_and_b32 v{dst}, 0xffff0000, v{src}")
    e(f"v_pk_mul_f32 {V(aw, 2)}, {V(aw, 2)}, {V(vDT, 2)}")
    e(f"v_mul_f32 v{aw}, 0x3fb8aa3b, v{aw}")
    e(f"v_mul_f32 v{aw + 1}, 0.15915494, v{aw + 1}")
    AW.append(aw); Bc.append(b); Cc.append(c)


def direct(m):
    out, tmp = [], []
    for s in range(2):
        d, t = alloc(), alloc()
        if m == 1:
            e(f"v_exp_f32 v{t}, v{AW[s]}")
            e(f"v_fract_f32 v{t + 1}, v{AW[s] + 1}")
        else:
            lit = {8: "0x41000000", 128: "0x43000000"}[m]
            e(f"v_mul_f32 v{t}, {lit}, v{AW[s]}")
            e(f"v_mul_f32 v{t + 1}, {lit}, v{AW[s] + 1}")
            e(f"v_exp_f32 v{t}, v{t}")
            e(f"v_fract_f32 v{t + 1}, v{t + 1}")
        out.append(d); tmp.append(t)
    for s in range(2):
        e(f"v_cos_f32 v{out[s]}, v{tmp[s] + 1}")
        e(f"v_sin_f32 v{out[s] + 1}, v{tmp[s] + 1}")
    for s in range(2):
        e(f"v_pk_mul_f32 {V(out[s], 2)}, {V(out[s], 2)}, {V(tmp[s], 2)} op_sel:[0,0] op_sel_hi:[1,0]")
    free(*tmp)
    return tuple(out)


q8 = direct(8)
X = cmul2(Cc, Bc)
for s in range(2):
    e(f"v_pk_mul_f32 {V(X[s], 2)}, {V(X[s], 2)}, {V(vDT, 2)} neg_hi:[0,1]")
E = {}
for rho in range(16):
    if rho < 15:
        Xn = cmul2(X, q8, conj=True)
    put_row(X, rho)
    free(*X)
    X = Xn
read_tile(0)
E[1] = direct(1)
q128 = direct(128)
stamp(20)
E[8] = q8
for l in range(1, 9):
    if l < 7:
        E[l + 1] = cmul2(E[l], E[1])
    put_row(E[l], l - 1)
for b in range(8):
    E[129 + b] = cmul2(E[1 + b], q128)
    put_row(E[129 + b], 8 + b)
    if b % 2 == 0:
        free(*E[129 + b])
        free(*E[1 + b])
read_tile(1)
q256 = cmul2(q128, q128)
q512 = cmul2(q256, q256)
q1024 = cmul2(q512, q512)
stamp(21)
for c in range(2):
    for b in range(4):
        l = 258 + 128 * c + 2 * b
        E[l] = cmul2(E[l - 256], q256)
        put_row(E[l], 4 * c + b)
for c in range(4):
    for b in range(2):
        l = 516 + 128 * c + 4 * b
        E[l] = cmul2(E[l - 512], q512)
        put_row(E[l], 8 + 2 * c + b)
        if b == 0:
            free(*E[l])
read_tile(2)
stamp(22)
for c in range(8):
    l = 1032 + 128 * c
    z = cmul2(E[l - 1024], q1024)
    put_row(z, c)
    free(*z)
put_row(None, 8)
read_tile(3)
e("v_mov_b32 v66, 0"); e("v_mov_b32 v67, 0")
e.d(f"ds_write_b64 v{vST8}, v[66:67]")
stamp(4)
e.wv(tW0)
e("s_branch Lg1")

e.restore(st_ab)
e("Lbeta:")
e.wl()
first_stamp()
set_srds()
gate_issue()
e("s_barrier")
st_b = e.state()


def beta_head(ticks):
    for w in range(4):
        for op in stage_dma_ops(0, w, "x"):
            tx = op()
    for op in stage_dma_ops(0, parts="w"):
        op()
    e.bg.extend(next_stage_ops())
    for w in range(4):
        e.bg.extend(stage_dma_ops(RING, w))
    e.bg.extend(next_stage_ops())
    for w in range(4):
        e.bg.extend(stage_dma_ops(2 * RING, w, "x"))
    e.tick(ticks)
    g1_frag_addrs()
    late_addrs(True)
    return tx


def dummies():
    e("s_mov_b64 exec, 1")
    for i in range(16):
        e.v(f"buffer_store_dword v{vL16}, off, {S(rST, 4)}, 0")
    e("s_mov_b64 exec, -1")


e(f"s_cmp_lt_u32 s{sCB}, 10")
e("s_cbranch_scc1 Lb_ut")
e(f"s_cmp_lg_u32 s{sCB}, 13")
e("s_cbranch_scc1 Lb_none")
e(f"s_cmp_ge_u32 s{sRB}, 12")
e("s_cbranch_scc1 Lb_none")
e(f"s_add_u32 s{sU}, s{sRB}, 128")
tk = w2_unit_issue(vSTW, None, L_UNIT)
beta_head(0)
tr_addr0(vST8)
e(f"v_add_u32 v{vST8}, {L_UNIT}, v{vST8}")
e.wv(tk)
gate_store()
tk_tag = e.v(tag_load)
tS = w2_unit_out(vST8, 64, (0, 1))
e.flush_bg()
get_tag(tk_tag)
e.wv(tS)
store_flag(rWS, sP0F)
dummies()
e("s_branch Lb_done")
e.restore(st_b)
e("Lb_none:")
tx = beta_head(OPT["btick"])
e.wv(tx)
gate_store()
e.flush_bg()
dummies()
e("s_branch Lb_done")
e.restore(st_b)
e("Lb_ut:")
tx = beta_head(OPT["btick"])
vU0, vSW, vSR, vUS = 48, 52, 53, 54
e(f"v_lshrrev_b32 v{vTMP}, 2, v{vI}")
e(f"v_lshl_add_u32 v{vTM2}, v{vG}, 3, v{vTMP}")
e(f"v_lshlrev_b32 v{vU0}, 7, v{vTM2}")
e(f"v_lshrrev_b32 v{vTMP}, 3, v{vI}")
e(f"v_bfe_u32 v{vTM2}, v{vI}, 1, 1")
e(f"v_xor_b32 v{vTMP}, v{vTMP}, v{vTM2}")
e(f"v_and_b32 v{vTM2}, 1, v{vG}")
e(f"v_lshl_or_b32 v{vTMP}, v{vTM2}, 2, v{vTMP}")
e(f"v_lshl_add_u32 v{vU0}, v{vTMP}, 4, v{vU0}")
e(f"v_and_b32 v{vTM2}, 1, v{vI}")
e(f"v_lshl_add_u32 v{vU0}, v{vTM2}, 3, v{vU0}")
for k in range(1, 4):
    e(f"v_xor_b32 v{vU0 + k}, {k << 5}, v{vU0}")
e(f"v_mul_u32_u24 v{vTMP}, 272, v{vI}")
e(f"v_lshl_add_u32 v{vTMP}, v{vG}, 4, v{vTMP}")
e(f"v_add_u32 v{vSW}, {L_SCR}, v{vTMP}")
e(f"v_mul_u32_u24 v{vTMP}, 272, v{vG}")
e(f"v_lshl_add_u32 v{vTMP}, v{vI}, 4, v{vTMP}")
e(f"v_add_u32 v{vSR}, {L_SCR}, v{vTMP}")
e(f"v_mul_u32_u24 v{vTMP}, {UTP}, v{vG}")
e(f"v_lshl_add_u32 v{vUS}, v{vI}, 4, v{vTMP}")
e(f"s_mul_i32 s{sC1}, s{sCS}, {64 * UTP}")
e(f"s_lshl_b32 s{sT[0]}, s{sRB}, 8")
e(f"s_add_u32 s{sC1}, s{sC1}, s{sT[0]}")
e(f"s_add_u32 s{sC1}, s{sC1}, {WS_UT}")
e(f"s_lshl4_add_u32 s{sP0F}, s{sCS}, s{sRB}")
e(f"s_lshl_b32 s{sP0F}, s{sP0F}, 6")
e(f"s_add_u32 s{sP0F}, s{sP0F}, {WS_FUT}")
e(f"s_mov_b32 s{rST + 2}, {WS_SIZE}")
e.wv(tx)
stamp(3)
tks = {}
for dt in range(4):
    for tq in range(4):
        for hh in range(2):
            tks[dt] = e.d(f"ds_read_b64_tr_b16 {V(64 + 16 * dt + 4 * tq + 2 * hh, 2)}, v{vU0 + (dt ^ hh)} offset:{hh * 512 + tq * 4096}")
    e.tick(4)
trd = {}
for dt in range(4):
    e.wl(tks[dt])
    for tq in range(4):
        e.d(f"ds_write_b128 v{vSW}, {V(64 + 16 * dt + 4 * tq, 4)} offset:{(dt & 1) * 4352 + tq * 64}")
        e.tick(1)
    for j in range(4):
        trd[dt, j] = e.d(f"ds_read_b128 {V(HR + 16 * dt + 4 * j, 4)}, v{vSR} offset:{(dt & 1) * 4352 + j * 1088}")
e.flush_bg()
for dt in range(4):
    for j in range(4):
        e(f"s_add_u32 s{sT[3]}, s{sC1}, {(16 * dt + 4 * j) * UTP}")
        e.wl(trd[dt, j])
        e.v(f"buffer_store_dwordx4 {V(HR + 16 * dt + 4 * j, 4)}, v{vUS}, {S(rWS, 4)}, s{sT[3]} offen {SC}")
e("Lb_done:")
e.join()
e.raw("s_waitcnt vmcnt(63)")
stamp(4)

e("Lg1:")
e.join()
ACC = 64
FA, FB = (192, 224), (208, 240)
D0, D1, D2 = 160, 164, 168
tk_tag = e.v(tag_load)
e("s_barrier")
stamp(5)
e(f"s_cmp_eq_u32 s{sGATE}, 27")
e("s_cbranch_scc1 Lg1gate")
st_g1 = e.state()


def kmf(t, k):
    D = (D0, D1, D2)[t - 1]
    return lambda: e(f"{MF} {V(D, 4)}, {A(32 * t + 4 * k, 4)}, {A(4 * k, 4)}, {'0' if k == 0 else V(D, 4)}")


def g1(gate):
    rt = {}
    w2cur[0] = None

    def reads(n):
        s, kk = divmod(n, 2)
        b = s % 3
        st, off = (1, 0) if b == 2 else (0, b * RING)
        p = n & 1

        def ra(i, hh):
            rt[n, "a", i] = e.d(f"ds_read_b64_tr_b16 {A(FA[p] + 4 * i + 2 * hh, 2)}, v{vTA + 4 * st + i} offset:{off + 16384 + kk * 8192 + hh * 1024}")

        def rb(i):
            rt[n, "b", i] = e.d(f"ds_read_b128 {A(FB[p] + 4 * i, 4)}, v{vXA + 2 * st + kk} offset:{off + i * 2048}")

        def rg():
            if kk == 0:
                e(f"s_lshl_b32 s{sT[3]}, s{sCS}, 7")
                e(f"s_add_u32 s{sT[3]}, s{sT[3]}, {L_GW}")
                e(f"v_lshl_add_u32 v{vGG}, v{vG}, 4, s{sT[3]}")
                e(f"s_add_u32 s{sCS}, s{sCS}, 1")
                e(f"s_cmp_eq_u32 s{sCS}, 10")
                e(f"s_cselect_b32 s{sCS}, 0, s{sCS}")
            rt[n, "a", 0] = e.d(f"ds_read_b128 {A(FA[p], 4)}, v{vGG} offset:{64 * kk}")
        if gate:
            return [rg] + [lambda i=i: rb(i) for i in range(4)]
        return [lambda: ra(0, 0), lambda: rb(0), lambda: ra(0, 1), lambda: rb(1), lambda: ra(1, 0), lambda: rb(2), lambda: ra(1, 1), lambda: rb(3),
                lambda: ra(2, 0), lambda: ra(2, 1), lambda: ra(3, 0), lambda: ra(3, 1)]

    stage_tk = {}
    at = {}

    def AT(g, fn):
        at.setdefault(g, []).append(fn)

    def plan_stage(s, g0, step, parts="xw"):
        buf = (s % 3) * RING
        ops = stage_dma_ops(buf, parts=parts, setm0=False)

        def last(op=ops[-1]):
            stage_tk[s] = op()
        ops = ops[:-1] + [last]
        i0 = 8 - len(ops)
        if i0 == 0:
            AT(g0 - 1, lambda: e(f"s_add_u32 m0, s{sLB}, {buf}"))
        AT(g0 + 4 * step - 1, lambda: e(f"s_add_u32 m0, s{sLB}, {buf + 16384}"))
        for i, op in enumerate(ops):
            AT(g0 + step * (i + i0), op)
        if s < 9:
            a, b, c, d = next_stage_ops()
            AT(g0 + 5 * step + 2, a)
            AT(g0 + 5 * step + 3, b)
            AT(g0 + 6 * step + 1, d)
            AT(g0 + 7 * step + 1, c)

    for op in reads(0):
        op()
    e.smem = False
    plan_stage(2, -14, 4, "w")
    for s in range(7):
        plan_stage(s + 3, 16 * (2 * s + 1) + 6, 4)
    CHK = OPT["chk"]
    AT(16 * CHK - 24, lambda: misc.__setitem__("p0", e.v(fl_load(vFP))))

    def hb():
        e(f"s_and_b32 s{sT[0]}, s{sW}, 1")
        e(f"s_lshl1_add_u32 s{sT[0]}, s{sRB}, s{sT[0]}")
        e(f"s_lshl_b32 s{sFL}, s{sT[0]}, 5")
    AT(268, hb)
    AT(269, lambda: (e(f"s_add_u32 s{sFL}, s{sFL}, s{sGATE}"), e(f"s_lshl_b32 s{sFL}, s{sFL}, 6")))
    AT(270, lambda: (e(f"s_add_u32 s{sFL}, s{sFL}, {WS_FH}"), e(f"s_mul_i32 s{sC1}, s{sT[0]}, {4 * KS}")))
    AT(271, lambda: (e(f"s_lshl_b32 s{sC2}, s{sGATE}, 11"), e(f"s_add_u32 s{sC1}, s{sC1}, s{sC2}")))
    AT(272, lambda: (e(f"s_add_u32 s{sC1}, s{sC1}, {WS_HF}"), e(f"s_lshl_b32 s{sC2}, s{sT[0]}, 8")))
    AT(16 * CHK - 2, lambda: (e(f"s_mul_i32 s{sT[1]}, s{sCH}, {UTP}"), e(f"s_add_u32 s{sT[1]}, s{sT[1]}, {WS_UT}")))
    for n in range(20):
        s, kk = divmod(n, 2)
        p = n & 1
        if n == CHK:
            spin_check(misc["p0"], vFP)
            stamp(14)
            e.bg += [lambda j=j: misc.__setitem__("ut", e.v(f"buffer_load_dwordx4 {V(YST + 4 * j, 4)}, v{vL16}, {S(rWS, 4)}, s{sT[1]} offen offset:{1024 * j} sc1")) for j in range(4)]
            e.bg += [lambda k=k: w2_load(k) for k in W2ORD[:OPT["nw2"]]]
        rd = reads(n + 1) if n < 19 else []
        for k in range(16):
            i, j = divmod(k, 4)
            if n == 19:
                i = (i + 2) % 4
            if kk == 1 and k == 4:
                e.wl()
                stamp(20 + 2 * s, grp=2)
                if s == 0:
                    e.raw("s_waitcnt vmcnt(37)")
                elif s < 9:
                    e.wv(stage_tk[s + 1])
                e("s_barrier")
                stamp(21 + 2 * s, grp=2)
                if s == 1:
                    get_tag(tk_tag)
                    store_flag(rST, sP0F)
            if i == 0 or not gate:
                if k == 0:
                    e.wl(rt[n, "b", 3] if n < 19 or gate else rt[n, "a", 2])
                elif k == 8:
                    e.wl(rt[n, "a", 0 if gate else 3])
                a = ACC + 16 * i + 4 * j
                e(f"{MF} {V(a, 4)}, {A(FA[p] + 4 * i, 4)}, {A(FB[p] + 4 * j, 4)}, {'0' if n == 0 else V(a, 4)}")
            if (kk == 0 or k >= 4) and rd:
                rd.pop(0)()
            for fn in at.pop(16 * n + k, []):
                fn()
            if (16 * n + k) % OPT["gper"] == 3 and 16 * n + k > 242:
                e.tick()
        assert not rd
    assert not at, at
    e.flush_bg()
    stamp(6)
    km = [kmf(t, k) for k in range(8) for t in (1, 2, 3)]
    if gate:
        for fn in km:
            fn()
        for j in range(1, 4):
            e(f"v_cmp_eq_u32 vcc, {j}, v{vG}")
            e(f"v_cndmask_b32 v{ACC}, v{ACC}, v{ACC + 4 * j}, vcc")
        e(f"v_mul_f32 v{ACC}, 0xbfb8aa3b, v{ACC}")
        e(f"v_exp_f32 v{ACC}, v{ACC}")
        e(f"v_add_f32 v{ACC}, 1.0, v{ACC}")
        e(f"v_rcp_f32 v{ACC}, v{ACC}")
        e(f"v_lshlrev_b32 v{vTMP}, 2, v{vLANE}")
        e(f"s_add_u32 s{sC2}, s{sC2}, {WS_G}")
        e.raw(f"buffer_store_dword v{ACC}, v{vTMP}, {S(rWS, 4)}, s{sC2} offen {SC}")
        for q in range(4):
            e(f"v_mov_b32 v{ACC + 4 + q}, 0")
    for pr in (1, 0):
        for j in range(4):
            o = ACC + 32 * pr + 4 * j
            a1 = o + 16
            if not gate:
                km.pop(0)()
                e(f"v_cvt_pk_bf16_f32 v{o}, v{o}, v{o + 1}")
                e(f"v_cvt_pk_bf16_f32 v{o + 1}, v{o + 2}, v{o + 3}")
                e(f"v_cvt_pk_bf16_f32 v{o + 2}, v{a1}, v{a1 + 1}")
                km.pop(0)()
                e(f"v_cvt_pk_bf16_f32 v{o + 3}, v{a1 + 2}, v{a1 + 3}")
                for q in range(4):
                    e(f"v_pk_max_i16 v{o + q}, v{o + q}, 0")
                    if q == 1:
                        km.pop(0)()
            e(f"s_add_u32 s{sT[2]}, s{sC1}, {KS * j}")
            e.v(f"buffer_store_dwordx4 {V(ACC + 4 if gate else o, 4)}, v{vL16}, {S(rWS, 4)}, s{sT[2]} offen offset:{1024 * pr} {SC if OPT['hsc'] else ''}")


g1(False)
e("Lpost:")
tH = e.vm - 1
tUTl = misc["ut"]
vm_post = e.vm
w2_post = w2cur[0]
e.lg += 1000
e.lg_done = 0
stamp(7)
e(f"s_cmp_eq_u32 s{sW}, 3")
e("s_cbranch_scc1 Lbeta2")
st_post = e.state()

e.bg += [lambda k=k: w2_load(k) for k in W2ORD[OPT["nw2"]:]]
e.smem = False
X0, Y, Z = 172, 176, 184
LO, HI = 0xffffffff, 0xffffffff00000000


def grp(mask, *ins_):
    def f():
        if mask != -1:
            setexec(mask)
        for x in ins_:
            e.d(x)
        if mask != -1:
            setexec(-1)
    return f


e.wv(tUTl)
e.d(f"ds_write_b128 v{vSTW}, {V(YST, 4)} offset:512")
e(f"v_cvt_pk_bf16_f32 v{X0}, v{D0 + 3}, v{D0 + 2}")
e(f"v_cvt_pk_bf16_f32 v{X0 + 1}, v{D0 + 1}, v{D0}")
e(f"v_cvt_pk_bf16_f32 v{X0 + 2}, v{D0 + 2}, v{D0 + 1}")
e.d(f"ds_write_b64 v{vA0}, {V(X0, 2)} offset:{K_E + 2 * (544 - 4)}")
e(f"v_cvt_pk_bf16_f32 v{Y}, v{D1 + 3}, v{D1 + 3}")
e.d(f"ds_write_b32 v{vA0}, v{X0 + 2} offset:{K_O + 2 * (545 - 3)}")
e(f"v_cvt_pk_bf16_f32 v{Y + 1}, v{D1 + 3}, v{D1 + 2}")
e.d(f"ds_write_b16_d16_hi v{vA0}, v{X0 + 1} offset:{K_O + 2 * (545 - 1)}")
e(f"v_cvt_pk_bf16_f32 v{Y + 2}, v{D1 + 1}, v{D1 + 1}")
e.d(f"ds_write_b16 v{vA0}, v{X0} offset:{K_O + 2 * (545 - 4)}")
e(f"v_cvt_pk_bf16_f32 v{Y + 3}, v{D1 + 1}, v{D1}")
e(f"v_cvt_pk_bf16_f32 v{Y + 4}, v{D1 + 2}, v{D1 + 1}")
grp(LO, f"ds_write_b128 v{vA1}, {V(Y, 4)} offset:{K_O + 2 * (545 - 265)}",
    f"ds_write_b16_d16_hi v{vA1}, v{Y + 3} offset:{K_E + 2 * (544 - 258)}", f"ds_write_b32 v{vA1}, v{Y + 2} offset:{K_E + 2 * (544 - 260)}",
    f"ds_write_b32 v{vA1}, v{Y + 4} offset:{K_E + 2 * (544 - 262)}", f"ds_write_b32 v{vA1}, v{Y} offset:{K_E + 2 * (544 - 264)}",
    f"ds_write_b16 v{vA1}, v{Y} offset:{K_E + 2 * (544 - 265)}")()

CA, UF, WO = 64, 96, 120
TF, T2, T3 = 0, 68, 92


def rd2(dst, addr, o):
    e.d(f"ds_read2_b32 {A(dst, 2)}, v{addr} offset0:{o} offset1:{o + 1}")
    return e.d(f"ds_read2_b32 {A(dst + 2, 2)}, v{addr} offset0:{o + 2} offset1:{o + 3}")


tT, tU, tF = {}, {}, {}


def t_read(q):
    o = 257 - 16 * q
    tT[q] = rd2(TF + 4 * q, vTE, o) if o + 3 <= 255 else rd2(TF + 4 * q, vTE2, o - 128)


def far_reg(z, dl):
    return T2 + 4 * (3 * z + dl - 2) if z < 2 else T3 + 4 * (dl - 4)


def far_read(z, dl):
    tF[z, dl] = rd2(far_reg(z, dl), vS, 64 * z + 64 - 16 * dl if z < 2 else 128 + 112 - 16 * dl)


useq = []
for i in range(-7, 57):
    useq.append(("U", i))
    if i >= 0 and i % 8 == 0 and i // 8 <= 5:
        useq.append(("P", i // 8))
NU = 6


def u_read(k):
    kind, i = useq[k]
    off = 480 + 64 * i if kind == "U" else 2 * (256 + 256 * i - 24)
    tU[k] = e.d(f"ds_read_b128 {V(UF + 4 * (k % NU), 4)}, v{vUA} offset:{off}")


for q in (7, 15):
    t_read(q)
u_read(0)
u_read(1)
for q in (6, 14, 5, 13):
    t_read(q)
for k in range(2, NU - 1):
    u_read(k)
e(f"v_cvt_pk_bf16_f32 v{Y + 5}, v{D1}, v{D1 + 1}")
e(f"v_cvt_pk_bf16_f32 v{Y + 6}, v{D1 + 2}, v{D1 + 3}")
e(f"v_readlane_b32 s{sC2}, v{Y}, 63")
e(f"v_cvt_pk_bf16_f32 v{Z}, v{D2}, v{D2 + 1}")
e(f"v_cvt_pk_bf16_f32 v{Z + 1}, v{D2 + 2}, v{D2 + 3}")
e(f"v_add_f32 v{Z + 2}, s{sDSK}, v{D2}")
e(f"v_cvt_pk_bf16_f32 v{Z + 2}, v{Z + 2}, v{Z + 2}")
for jj in range(4):
    e(f"v_and_b32 v{vBAND + 16 + jj}, s{sC2}, v{vBAND + 16 + jj}")
stamp(16)
side = [lambda q=q: t_read(q) for q in (4, 12, 3, 11, 2, 10, 1, 9)]
side += [grp(1 << 32, f"ds_write_b16 v{vA4}, v{Z + 2} offset:{K_E + 2 * 544}", f"ds_write_b16 v{vA4}, v{Z + 2} offset:{K_O + 2 * 545}"),
         grp(1 << 63, f"ds_write_b16 v{vA4}, v{X0} offset:{K_E + 2 * (544 - 257)}", f"ds_write_b16 v{vA4}, v{X0} offset:{K_O + 2 * (545 - 257)}"),
         grp(1 << 31, f"ds_write_b16 v{vA4}, v{Y} offset:{K_E + 2 * (544 - 514)}", f"ds_write_b16 v{vA4}, v{Y} offset:{K_O + 2 * (545 - 514)}"),
         lambda: (t_read(0), t_read(8), t_read(16)), lambda: None, lambda: None,
         grp(HI, f"ds_write_b32 v{vA2}, v{Y + 5} offset:{K_S2A + 4 * 79}", f"ds_write_b32 v{vA2}, v{Y + 6} offset:{K_S2A + 4 * (79 - 8)}"),
         grp(-1, f"ds_write_b128 v{vSTW}, {V(YST + 4, 4)} offset:{512 + 1024}")]
side += [lambda z=z, dl=dl: far_read(z, dl) for z in range(2) for dl in (2, 3, 4)]
side += [grp(LO, f"ds_write_b16 v{vA3}, v{Z} offset:{K_S3 + 4 * (127 - 64)}", f"ds_write_b16_d16_hi v{vA3}, v{Z} offset:{K_S3 + 4 * (127 - 72)}"),
         grp(LO, f"ds_write_b16 v{vA3}, v{Z + 1} offset:{K_S3 + 4 * (127 - 80)}", f"ds_write_b16_d16_hi v{vA3}, v{Z + 1} offset:{K_S3 + 4 * (127 - 88)}")]
side += [lambda dl=dl: far_read(2, dl) for dl in (4, 5, 6, 7)]
side += [lambda: None] * 8 + [grp(-1, f"ds_write_b128 v{vSTW}, {V(YST + 8, 4)} offset:{512 + 2048}")]
side += [lambda: None] * 8 + [grp(-1, f"ds_write_b128 v{vSTW}, {V(YST + 12, 4)} offset:{512 + 3072}")]

touched = set()
nmf = [0]
later = []


def mfma(acc, a, b, key=None):
    first = key is not None and key not in touched
    if key is not None:
        touched.add(key)
    c = "0" if (first or key is None) else V(acc, 4)
    e(f"{MF} {V(acc, 4)}, {a}, {b}, {c}")
    nmf[0] += 1
    if side:
        side.pop(0)()
    if nmf[0] % OPT["cper"] == 0 and nmf[0] >= OPT["cstart"]:
        e.tick()
    if nmf[0] % 20 == 0:
        stamp(20 + nmf[0] // 20, grp=3)
    if nmf[0] == OPT["hflag_at"]:
        e.wv(tH)
        store_flag(rWS, sFL)
        stamp(19, grp=3)
    if nmf[0] == OPT["hchk_at"]:
        assert not e.bg
        misc["hf"] = e.v(fl_load(vFH))
    if nmf[0] == OPT["hchk_at"] + OPT["hlag"]:
        e.wv(misc["hf"])
        e(f"v_cmp_ne_u64 vcc, {S(sTAG, 2)}, {V(vFL, 2)}")
        e(f"s_cmp_eq_u64 vcc, 0")
        e(f"s_cselect_b32 s{sP0F}, 1, 0")
    k0 = nmf[0] - (OPT["hchk_at"] + OPT["hlag"])
    if k0 >= 1 and k0 % 2 == 1 and k0 // 2 < OPT["npre"]:
        lab = e.label("Lnp")
        e(f"s_cbranch_vccnz {lab}")
        sv = e.state()
        h_load(k0 // 2)
        e.restore(sv)
        e(f"{lab}:")
        misc["pre"] = k0 // 2 + 1
    if later and later[0][0] <= nmf[0] and later[0][2] == "v":
        later.pop(0)[1]()
        if nmf[0] % 2 and later and later[0][0] <= nmf[0] and later[0][2] == "v":
            later.pop(0)[1]()


def run_later_mfma():
    k = 0
    while later and later[0][0] <= nmf[0] and later[0][2] == "m" and k < 4:
        later.pop(0)[1]()
        k += 1


def finish_tile(a):
    def f():
        r = CA + 4 * a
        e(f"v_cvt_pk_bf16_f32 v{r}, v{r}, v{r + 1}")
        e(f"v_cvt_pk_bf16_f32 v{r + 1}, v{r + 2}, v{r + 3}")
        e.d(f"ds_write_b64 v{vYW}, {V(r, 2)} offset:{4608 + 512 * a}")
    return f


for k, (kind, i) in enumerate(useq):
    if k + NU - 1 < len(useq):
        u_read(k + NU - 1)
    e.wl(tU[min(k | 1, len(useq) - 1)])
    u = V(UF + 4 * (k % NU), 4)
    if kind == "U":
        for a in range(8):
            q = 8 * a - i
            if 0 <= q <= 16:
                e.wl(tT[q])
                mfma(CA + 4 * a, A(TF + 4 * q, 4), u, key=a)
        if i >= 0 and i % 8 == 0:
            C = i // 8
            if C <= 3:
                mfma(CA + 4 * (C + 4), V(vBAND + 16, 4), u, key=C + 4)
            if C <= 5:
                assert not later, "window regs still in use"
                mfma(WO, u, V(vBAND, 4))
                mfma(WO + 4, u, V(vBAND + 4, 4))
                if C <= 3:
                    mfma(WO + 16, u, V(vBAND + 8, 4))
            else:
                later.append((nmf[0] + 3, finish_tile(C), "v"))
    else:
        C = i
        mfma(WO + 8, u, V(vBAND, 4))
        mfma(WO + 12, u, V(vBAND + 4, 4))
        if C <= 3:
            mfma(WO + 20, u, V(vBAND + 12, 4))
        t0 = nmf[0] + 3
        later.append((nmf[0], finish_tile(C), "v"))
        for z in range(3 if C <= 3 else 2):
            for r in range(4):
                later.append((t0 - (2 if z == 0 else 0), lambda z=z, r=r: e(f"v_cvt_pk_bf16_f32 v{WO + 8 * z + r}, v{WO + 8 * z + r}, v{WO + 8 * z + 4 + r}"), "v"))
            for dl in ((2, 3, 4) if z < 2 else (4, 5, 6, 7)):
                if C + dl <= 7:
                    def far(z=z, dl=dl, C=C):
                        e.wl(tF[(z, dl)])
                        mfma(CA + 4 * (C + dl), V(WO + 8 * z, 4), A(far_reg(z, dl), 4), key=C + dl)
                    later.append((t0, far, "m"))
    run_later_mfma()
    if kind == "U" and i == 52:
        e(f"s_mov_b32 s{rST + 2}, s{sYOK}")
        e(f"s_mul_i32 s{sC1}, s{sCH}, {YTP}")
        e(f"s_add_u32 s{sC1}, s{sC1}, {WS_YT}")
        tY = [e.d(f"ds_read_b128 {V(YST + 4 * j, 4)}, v{vSTW} offset:{4608 + 1024 * j}") for j in range(3)]
while later:
    later.pop(0)[1]()
print("conv mfma:", nmf[0], "pre", misc["pre"], file=sys.stderr)
assert misc["pre"] == OPT["npre"] and not side
tY.append(e.d(f"ds_read_b128 {V(YST + 12, 4)}, v{vSTW} offset:{4608 + 3072}"))
e(f"s_lshl_b32 s{sFL}, s{sCH}, 6")
e(f"s_add_u32 s{sFL}, s{sFL}, {WS_FY}")
for j in range(4):
    e.wl(tY[j])
    e.v(f"buffer_store_dwordx4 {V(YST + 4 * j, 4)}, v{vL16}, {S(rST, 4)}, s{sC1} offen offset:{1024 * j} {SC}")
stamp(8)
e(f"s_cmp_lg_u32 s{sP0F}, 0")
e("s_cbranch_scc1 Lg2b")
spin_check(misc["hf"], vFH)
e("s_branch Lg2")

e.restore(st_post)
w2cur[0] = w2_post
e("Lbeta2:")
for i, k in enumerate(W2ORD[OPT["nw2"]:]):
    w2_load(k)
    if i == OPT["bout"]:
        e.wv(tH)
        store_flag(rWS, sFL)
e(f"s_mov_b32 s{rST + 2}, 0")
tk = e.v(fl_load(vFH))
stamp(8)
spin_check(tk, vFH, "lsleep")
e("s_branch Lg2")

e.restore(st_g1)
e("Lg1gate:")
g1(True)
assert e.vm == vm_post and misc["ut"] == tUTl
e("s_branch Lpost")

e.restore(st_entry)
e("Lfree:")
e(f"s_lshl2_add_u32 s{sT[0]}, s{sXCD}, s{sSLOT}")
e(f"s_lshl_b32 s{sU}, s{sW}, 5")
e(f"s_add_u32 s{sU}, s{sU}, s{sT[0]}")
e(f"s_lshl_b32 s{sLB}, s{sW}, 14")
e.wl()
first_stamp()
e(f"s_cmp_lg_u32 s{sU}, 96")
e("s_cbranch_scc1 Lnononce")
e.raw(f"s_load_dwordx2 {S(sTAG, 2)}, {S(pWS, 2)}, 0")
e.raw("s_waitcnt lgkmcnt(0)")
e(f"s_mul_i32 s{sTAG}, s{sTAG}, 0x9e3779b1")
e(f"s_add_u32 s{sTAG}, s{sTAG}, 0x7f4a7c15")
e(f"s_mul_i32 s{sTAG + 1}, s{sTAG + 1}, 0x85ebca6b")
e(f"s_add_u32 s{sTAG + 1}, s{sTAG + 1}, s{sTAG}")
e(f"s_or_b32 s{sTAG + 1}, s{sTAG + 1}, 1")
e(f"v_mov_b32 v64, s{sTAG}")
e(f"v_mov_b32 v65, s{sTAG + 1}")
e("s_mov_b64 exec, 1")
e.raw(f"global_store_dwordx2 v{vZ}, v[64:65], {S(pDBG, 2)} {SC}")
e.raw(f"global_store_dwordx2 v{vZ}, v[64:65], {S(pWS, 2)} {SC}")
e("s_mov_b64 exec, -1")
e("Lnononce:")
set_srds()
tk = w2_unit_issue(vSTW, sLB, 0)
tr_addr0(vST8)
e(f"v_add_u32 v{vST8}, s{sLB}, v{vST8}")
late_addrs(False)
e.wv(misc["half"])
stamp(3)
w2_unit_out(vST8, 64, (0,))
tk_tag = e.v(tag_load)
e.wv(tk)
tS = w2_unit_out(vST8, 64, (1,))
get_tag(tk_tag)
e.wv(tS)
store_flag(rWS, sP0F)
stamp(4)
e("s_barrier")
tk = e.v(fl_load(vFP))
spin_check(tk, vFP, "lsleep")
stamp(5)
w2cur[0] = None
for k in range(35):
    w2_load(k)
e(f"s_mov_b32 s{sFL}, 0")
tk = e.v(fl_load(vFH))
stamp(8)
spin_check(tk, vFH, "lsleep")

e("Lg2:")
NPRE = OPT["npre"]
for x in range(NPRE):
    h_load(x)
e("Lg2b:")
tAll = e.join()
for x in range(NPRE):
    tHl[x] = tAll - (NPRE - 1) + x
stamp(9)
AC = (64, 84)
PRE, OT, TH, AT_, XR, YL, vG_ = 104, 124, 8, 28, 38, 144, 156
NT, PF = 8 * NK, 15
e.smem = False
for x in range(NPRE, PF):
    h_load(x)
fill = []
st = {}
NOP = lambda: None


def ins(s):
    fill.append(lambda: e(s))


def drain():
    while fill:
        fill.pop(0)()


for x in range(NT):
    p, ksl = divmod(x, NK)
    ph, pp = divmod(p, 4)
    acc = AC[p & 1]
    if ksl == 0 and pp >= 1:
        pa = AC[(p - 1) & 1]
        gap = [NOP] * (1 if pp == 3 else 3)
        wr = []
        for d in range(5):
            wr += [lambda d=d, pa=pa, pp=pp: e.d(f"ds_write_b128 v{vP + pp - 1}, {V(pa + 4 * d, 4)} offset:{5120 * (pp - 1) + 1024 * d}")] + gap
        fill[0:0] = [NOP] * 2 + wr
    if p == 4 and ksl == 0:
        for r in range(20):
            ins(f"v_add_f32 v{PRE + r}, v{PRE + r}, v{AC[1] + r}")
            if r % 2:
                ins(f"v_cvt_pk_bf16_f32 v{TH + r // 2}, v{PRE + r - 1}, v{PRE + r}")
            if r == 7:
                fill.append(lambda: e.v(f"buffer_store_dwordx4 {V(TH, 4)}, v{vL16}, {S(rWS, 4)}, s{sXO} offen {SC}"))
            if r == 15:
                fill.append(lambda: e.v(f"buffer_store_dwordx4 {V(TH + 4, 4)}, v{vL16}, {S(rWS, 4)}, s{sXO} offen offset:1024 {SC}"))
        fill.append(lambda: st.__setitem__("xs", e.v(f"buffer_store_dwordx2 {V(TH + 8, 2)}, v{vL8}, {S(rWS, 4)}, s{sXO} offen offset:2048 {SC}")))
        for q in range(4):
            ins(f"v_add_u32 v{vP + q}, 61440, v{vP + q}")
    if p == 5 and ksl == 0:
        assert "xs" in st and len(fill) == 2 + 20, len(fill)
    if x == 5 * NK + OPT["xfl"]:
        e.wv(st["xs"])
        store_flag(rWS, sXF)
        stamp(40, grp=0)
    if x == NT - OPT["yf"]:
        st["fy"] = e.v(fl_load(vFY))
        st["g"] = e.v(f"buffer_load_dword v{vG_}, v{vX}, {S(rWS, 4)}, s{sGB} offen sc1")
    if x == NT - OPT["yl"]:
        spin_check(st["fy"], vFY)
        stamp(18)
        for j in range(3):
            if j == 2:
                setexec(0xffffffff)
            st["y"] = e.v(f"buffer_load_dwordx4 {V(YL + 4 * j, 4)}, v{vYG}, {S(rWS, 4)}, s{sYB} offen sc1")
            e(f"s_add_u32 s{sYB}, s{sYB}, {8 * YTP}")
        setexec(-1)
        e.v(f"buffer_load_dwordx4 {V(XR, 4)}, v{vL16}, {S(rWS, 4)}, s{sXI} offen sc1")
        e.v(f"buffer_load_dwordx4 {V(XR + 4, 4)}, v{vL16}, {S(rWS, 4)}, s{sXI} offen offset:1024 sc1")
        st["x"] = e.v(f"buffer_load_dwordx2 {V(XR + 8, 2)}, v{vL8}, {S(rWS, 4)}, s{sXI} offen offset:2048 sc1")
    if pp == 3 and ksl == 3:
        drain()
        e.wl()
        e("s_barrier")
        stamp(10 if ph else 17)
        for d in range(5):
            for q, dst in enumerate((PRE, OT, TH)):
                fill.append(lambda d=d, q=q, dst=dst: st.__setitem__("pt%d" % d, e.d(f"ds_read_b128 {V(dst + 4 * d, 4)}, v{vP + 3} offset:{5120 * q + 1024 * d}")))
        if ph == 0:
            for r in range(20):
                if r % 4 == 0:
                    fill.append(lambda r=r: e.wl(st["pt%d" % (r // 4)]))
                ins(f"v_add_f32 v{PRE + r}, v{PRE + r}, v{OT + r}")
                ins(f"v_add_f32 v{PRE + r}, v{PRE + r}, v{TH + r}")
    if x % 4 == 0:
        stamp(20 + x // 4, grp=4)
    if x + PF < NT:
        h_load(x + PF)
    e.wv(tHl[x])
    if x == OPT["yfl"]:
        e.wv(tAll)
        store_flag(rST, sFL)
        stamp(19, grp=0)
    for d in range(5):
        c = "0" if ksl == 0 else V(acc + 4 * d, 4)
        e(f"{MF} {V(acc + 4 * d, 4)}, {w2_reg(d, ksl)}, {V(HR + 4 * (x % 16), 4)}, {c}")
        for _ in range(2 if (p in (3, 4) and d < 4) else OPT["fr"]):
            if fill:
                fill.pop(0)()
drain()
stamp(11)
e.wv(st["y"])
for j in range(3):
    if j == 2:
        setexec(0xffffffff)
    e.d(f"ds_write_b128 v{vAW}, {V(YL + 4 * j, 4)} offset:{8 * 160 * j}")
setexec(-1)
acc = AC[1]
e.wl(st["pt4"])
for r in range(0, 20, 2):
    e(f"v_pk_add_f32 {V(PRE + r, 2)}, {V(PRE + r, 2)}, {V(OT + r, 2)}")
    e(f"v_pk_add_f32 {V(TH + r, 2)}, {V(TH + r, 2)}, {V(acc + r, 2)}")
e.wl()
e("s_barrier")
for d in range(5):
    st["at%d" % d] = e.d(f"ds_read_b64_tr_b16 {V(AT_ + 2 * d, 2)}, v{vAR} offset:{16 * 160 * d}")
e.wv(st["x"])
e(f"v_mov_b32 v{vG_ + 1}, v{vG_}")
for r in range(0, 20, 2):
    e(f"v_lshlrev_b32 v{OT + r}, 16, v{XR + r // 2}")
    e(f"v_and_b32 v{OT + r + 1}, 0xffff0000, v{XR + r // 2}")
    e(f"v_pk_add_f32 {V(PRE + r, 2)}, {V(PRE + r, 2)}, {V(TH + r, 2)}")
    e(f"v_pk_add_f32 {V(PRE + r, 2)}, {V(PRE + r, 2)}, {V(OT + r, 2)}")
for d in range(5):
    e.wl(st["at%d" % d])
    for r in (0, 2):
        o = 4 * d + r
        e(f"v_lshlrev_b32 v{TH + o}, 16, v{AT_ + o // 2}")
        e(f"v_and_b32 v{TH + o + 1}, 0xffff0000, v{AT_ + o // 2}")
        e(f"v_pk_add_f32 {V(TH + o, 2)}, {V(TH + o, 2)}, {V(PRE + o, 2)} neg_lo:[0,1] neg_hi:[0,1]")
        e(f"v_pk_fma_f32 {V(PRE + o, 2)}, {V(TH + o, 2)}, {V(vG_, 2)}, {V(PRE + o, 2)}")
    e(f"v_cvt_pk_bf16_f32 v{PRE + 4 * d}, v{PRE + 4 * d}, v{PRE + 4 * d + 1}")
    e(f"v_cvt_pk_bf16_f32 v{PRE + 4 * d + 1}, v{PRE + 4 * d + 2}, v{PRE + 4 * d + 3}")
    e.d(f"ds_write_b64 v{vOW}, {V(PRE + 4 * d, 2)} offset:{32 * d}")
to = [e.d(f"ds_read_b128 {V(HR + 4 * j, 4)}, v{vOR + j}") for j in range(3)]
for j in range(3):
    e.wl(to[j])
    if j == 2:
        setexec(0xffffffff)
    e.v(f"buffer_store_dwordx4 {V(HR + 4 * j, 4)}, v{vOG + j}, {S(rOUT, 4)}, s{sOB} offen{('', ' sc1', ' nt', ' sc0 sc1')[OPT['osc']]}")
if OPT["stamp"]:
    setexec(-1)
    stamp(15)
    e.wv()
    stamp(12)
    stamp(13, rt=True)
    e(f"s_lshl2_add_u32 s{sT[0]}, s2, s{sW}")
    e(f"s_lshl_b32 s{sT[0]}, s{sT[0]}, 8")
    e(f"s_add_u32 s{sT[0]}, s{sT[0]}, {WS_STAMP}")
    e(f"v_lshlrev_b32 v{vTMP}, 2, v{vLANE}")
    e.v(f"buffer_store_dword v{vSTAMP}, v{vTMP}, {S(rWS, 4)}, s{sT[0]} offen")
if OPT["dbgtime"]:
    lab = e.label("Ldt")
    e.wv()
    e("s_and_b32 s92, s2, 31")
    e(f"s_add_u32 s92, s92, s{sW}")
    e("s_cmp_lg_u32 s92, 0")
    e(f"s_cbranch_scc1 {lab}")
    e("s_cmp_ge_u32 s2, 224")
    e(f"s_cbranch_scc1 {lab}")
    e.raw("s_memrealtime s[92:93]")
    e.raw("s_waitcnt lgkmcnt(0)")
    e("v_mov_b32 v8, s94")
    e("v_mov_b32 v9, s92")
    e("s_lshr_b32 s92, s2, 2")
    e("s_add_u32 s92, s92, 8")
    e("v_mov_b32 v10, s92")
    e("s_mov_b64 exec, 1")
    e.raw(f"global_store_dwordx2 v10, v[8:9], {S(pDBG, 2)}")
    e(f"{lab}:")
if OPT["delay"]:
    e(f"s_mov_b32 s92, {OPT['delay']}")
    e("Ldl:")
    for _ in range(15):
        e("s_nop 15")
    e("s_sub_u32 s92, s92, 1")
    e("s_cmp_lg_u32 s92, 0")
    e("s_cbranch_scc1 Ldl")
e("s_endpgm")
for x in cold:
    e.raw(x)
e("Lend:")
e("s_endpgm")

body, nn = insert_nops(e.L)
if OPT["align"]:
    body, nw, npad, size = align_pass(body)
    print("widened:", nw, "pads:", npad, "bytes:", size, file=sys.stderr)
    assert size < 128 * 384
print("instructions:", len(body), "nops inserted:", nn, file=sys.stderr)
hdr = open("gated_mix__ssm_conv_s4__dense_activation_relu__prompt.s.ref").read().split("; Override launch")[0]
out = [hdr.rstrip("\n"),
       "; generated by work/gen.py (hand-written generator)",
       "; @launch grid=(256,1,1) block=(256,1,1) lds=163840",
       '.amdgcn_target "amdgcn-amd-amdhsa--gfx950"', ".text", f".globl {KN}", ".p2align 8", f".type {KN},@function"]
out += body
out += ['.section .rodata,"a"', ".p2align 6", f".amdhsa_kernel {KN}",
        "  .amdhsa_next_free_vgpr 512", "  .amdhsa_next_free_sgpr 102", "  .amdhsa_accum_offset 256",
        "  .amdhsa_group_segment_fixed_size 0", "  .amdhsa_kernarg_size 128", "  .amdhsa_user_sgpr_count 2",
        "  .amdhsa_user_sgpr_kernarg_segment_ptr 1", "  .amdhsa_system_sgpr_workgroup_id_x 1", ".end_amdhsa_kernel"]
open(sys.argv[1], "w").write("\n".join(out) + "\n")
```
